```python
import torch

def _softmax(x, axis=-1):
    return torch.softmax(x, dim=axis)
def _gelu(x):
    return torch.nn.functional.gelu(x, approximate="tanh")
def _silu(x):
    return torch.nn.functional.silu(x)
def _sigmoid(x):
    return torch.sigmoid(x)
def _layernorm(x, axis=-1, eps=1e-5):
    m = x.mean(dim=axis, keepdim=True)
    v = x.var(dim=axis, keepdim=True, unbiased=False)
    return (x - m) / torch.sqrt(v + eps)
def _scatter_add(tgt, idx, src, axis=0):
    return tgt.clone().index_add_(axis, idx, src)
def _segment_sum(src, seg, n):
    out = torch.zeros((n,) + src.shape[1:], dtype=src.dtype)
    return out.index_add_(0, seg, src)
def _pad(x, pw):
    flat = tuple(v for pair in reversed(pw) for v in pair)
    return torch.nn.functional.pad(x, flat)

kernel_name = 'concat_heads__mha_block_cached__mha_block_cached__near_ridge'

def setup_inputs():

    _w = (lambda a: (lambda t: t.to(torch.bfloat16) if t.is_floating_point() else t)(torch.as_tensor(a)))
    def _A_setup():
        B, Sq, D = 8, 128, 512
        H, Sk, Dh = 32, 512, 128
        return {
            "x": _w((lambda *s: torch.randn(*s, dtype=torch.bfloat16) * 0.8)(B, Sq, D)),
            "k_cache": _w((lambda *s: torch.randn(*s, dtype=torch.bfloat16) * 0.8)(B, H, Sk, Dh)),
            "v_cache": _w((lambda *s: torch.randn(*s, dtype=torch.bfloat16) * 0.05)(B, H, Sk, Dh)),
            "wq": _w((lambda *s: torch.randn(*s, dtype=torch.bfloat16) * 0.8)(D, H * Dh) * (D ** -0.5)),
            "wo": _w((lambda *s: torch.randn(*s, dtype=torch.bfloat16) * 0.05)(H * Dh, D) * ((H * Dh) ** -0.5)),
        }
    _A_in = _A_setup()

    def _B_setup():
        B, Sq, D = 8, 128, 512
        H, Sk, Dh = 32, 512, 128
        return {
            "x": _w((lambda *s: torch.randn(*s, dtype=torch.bfloat16) * 0.8)(B, Sq, D)),
            "k_cache": _w((lambda *s: torch.randn(*s, dtype=torch.bfloat16) * 0.8)(B, H, Sk, Dh)),
            "v_cache": _w((lambda *s: torch.randn(*s, dtype=torch.bfloat16) * 0.05)(B, H, Sk, Dh)),
            "wq": _w((lambda *s: torch.randn(*s, dtype=torch.bfloat16) * 0.8)(D, H * Dh) * (D ** -0.5)),
            "wo": _w((lambda *s: torch.randn(*s, dtype=torch.bfloat16) * 0.05)(H * Dh, D) * ((H * Dh) ** -0.5)),
        }
    _B_in = _B_setup()

    return {
        "A_x": _A_in["x"],
        "A_k_cache": _A_in["k_cache"],
        "A_v_cache": _A_in["v_cache"],
        "A_wq": _A_in["wq"],
        "A_wo": _A_in["wo"],
        "B_x": _B_in["x"],
        "B_k_cache": _B_in["k_cache"],
        "B_v_cache": _B_in["v_cache"],
        "B_wq": _B_in["wq"],
        "B_wo": _B_in["wo"],
    }

def reference(A_x, A_k_cache, A_v_cache, A_wq, A_wo, B_x, B_k_cache, B_v_cache, B_wq, B_wo):
    def _A_ref(x, k_cache, v_cache, wq, wo):
        B, Sq, D = x.shape
        H, Dh = 32, 128
        q = (lambda x, *d: x.permute(*d))((x @ wq).reshape(B, Sq, H, Dh), 0, 2, 1, 3)
        scores = torch.einsum("bhqd,bhkd->bhqk", q, k_cache) * (Dh ** -0.5)
        p = _softmax(scores, axis=-1)
        o = torch.einsum("bhqk,bhkd->bhqd", p, v_cache)
        return (lambda x, *d: x.permute(*d))(o, 0, 2, 1, 3).reshape(B, Sq, H * Dh) @ wo

    def _B_ref(x, k_cache, v_cache, wq, wo):
        B, Sq, D = x.shape
        H, Dh = 32, 128
        q = (lambda x, *d: x.permute(*d))((x @ wq).reshape(B, Sq, H, Dh), 0, 2, 1, 3)
        scores = torch.einsum("bhqd,bhkd->bhqk", q, k_cache) * (Dh ** -0.5)
        p = _softmax(scores, axis=-1)
        o = torch.einsum("bhqk,bhkd->bhqd", p, v_cache)
        return (lambda x, *d: x.permute(*d))(o, 0, 2, 1, 3).reshape(B, Sq, H * Dh) @ wo

    a = _A_ref(A_x, A_k_cache, A_v_cache, A_wq, A_wo)
    b = _B_ref(B_x, B_k_cache, B_v_cache, B_wq, B_wo)
    return torch.concatenate([a, b], axis=-1)
```

```python
import re

TRANS = ('v_exp_f32', 'v_log_f32', 'v_rcp_f32', 'v_rsq_f32', 'v_sqrt_f32', 'v_sin_f32', 'v_cos_f32', 'v_rcp_iflag_f32')
NODST_S = ('s_cmp', 's_bitcmp', 's_waitcnt', 's_barrier', 's_branch', 's_cbranch', 's_nop', 's_endpgm', 's_setprio',
           's_sleep', 's_sendmsg', 's_setreg')

def regs_of(tok):
    tok = tok.strip()
    m = re.fullmatch(r'([vsa])\[(\d+):(\d+)\]', tok)
    if m: return m.group(1), set(range(int(m.group(2)), int(m.group(3)) + 1))
    m = re.fullmatch(r'([vsa])(\d+)', tok)
    if m: return m.group(1), {int(m.group(2))}
    if tok == 'vcc': return 's', {'vcc_lo', 'vcc_hi'}
    if tok in ('vcc_lo', 'vcc_hi', 'm0', 'exec_lo', 'exec_hi'): return 's', {tok}
    if tok == 'exec': return 's', {'exec_lo', 'exec_hi'}
    return 'x', set()

class Ins:
    def __init__(self, text):
        self.text = text
        t = text.split(';')[0].strip()
        t = re.split(r'\s+op_sel', t)[0]
        self.label = None
        if t.endswith(':'):
            self.label = t[:-1]; self.kind = 'label'; self.op = '';
            self.vd = self.vs = self.sd = self.ss = set(); self.ws = 0; return
        parts = t.split(None, 1)
        self.op = op = parts[0]
        rest = parts[1] if len(parts) > 1 else ''
        toks = [x.strip() for x in rest.split(',')] if rest else []
        mods = ''
        if toks:
            sp = toks[-1].split(None, 1)
            toks[-1] = sp[0]
            if len(sp) > 1: mods = sp[1]
        self.toks, self.mods = toks, mods
        vd, vs, sd, ss = set(), set(), set(), set()
        def rd(tok):
            k, r = regs_of(tok)
            if k == 'v': vs.update(r)
            elif k == 's': ss.update(r)
        def wr(tok):
            k, r = regs_of(tok)
            if k == 'v': vd.update(r)
            elif k == 's': sd.update(r)
        self.ws = 1
        self.cA = self.cB = self.cC = set()
        if op.startswith('v_mfma'):
            self.kind = 'mfma'
            wr(toks[0]); rd(toks[1]); rd(toks[2]); rd(toks[3])
            self.cA = regs_of(toks[1])[1]; self.cB = regs_of(toks[2])[1]
            self.cC = regs_of(toks[3])[1] if regs_of(toks[3])[0] == 'v' else set()
            self.passes = 8 if '32x32x16' in op else 4
        elif op.startswith('v_'):
            self.kind = 'valu'
            if op.startswith('v_permlane') and 'swap' in op:
                for t_ in toks[:2]: rd(t_); wr(t_)
            else:
                wr(toks[0])
                for t_ in toks[1:]: rd(t_)
                if op.startswith('v_cndmask') and len(toks) == 3: ss.update({'vcc_lo', 'vcc_hi'})
                if op.startswith(('v_fmac', 'v_mac', 'v_addc', 'v_subb')) : rd(toks[0])
                if op.startswith('v_add_co') or op.startswith('v_sub_co'): wr(toks[1])
        elif op.startswith('ds_'):
            self.kind = 'ds'
            if op.startswith('ds_read'):
                wr(toks[0]); rd(toks[1])
            else:
                for t_ in toks: rd(t_)
        elif op.startswith('buffer_') or op.startswith('global_'):
            self.kind = 'vmem'
            allm = ' ' + mods + ' '
            self.lds = ' lds ' in allm
            if op.startswith('buffer_load') and self.lds:
                for t_ in toks: rd(t_)
                ss.add('m0')
            elif op.startswith(('buffer_load', 'global_load')):
                wr(toks[0])
                for t_ in toks[1:]: rd(t_)
            elif 'atomic' in op:
                for t_ in toks: rd(t_)
                if ' sc0 ' in allm: wr(toks[0])
            else:
                for t_ in toks: rd(t_)
        elif op.startswith('s_'):
            self.kind = 'salu'
            if op.startswith('s_load') or op.startswith('s_memrealtime') or op.startswith('s_memtime'):
                self.kind = 'smem'; wr(toks[0])
                for t_ in toks[1:]: rd(t_)
            elif op.startswith(NODST_S):
                for t_ in toks: rd(t_)
                if op == 's_nop': self.ws = int(toks[0], 0) + 1
            else:
                wr(toks[0])
                for t_ in toks[1:]: rd(t_)
                if 'saveexec' in op: sd.update({'exec_lo', 'exec_hi'})
        else:
            raise Exception('unknown op ' + text)
        self.vd, self.vs, self.sd, self.ss = vd, vs, sd, ss

class Asm:
    def __init__(self):
        self.ins = []
        self.lg = []
        self.vm = []
        self.track_vm = False
    def raw(self, s): self.ins.append(s)
    def c(self, s): self.ins.append('; ' + s)
    def label(self, name): self.ins.append(Ins(name + ':'))
    def wait_lg(self, n):
        n = min(n, 15)
        if len(self.lg) > n:
            self.ins.append(Ins(f's_waitcnt lgkmcnt({n})'))
            self.lg = self.lg[len(self.lg) - n:] if n else []
    def wait_vm(self, n):
        assert n <= 63
        self.ins.append(Ins(f's_waitcnt vmcnt({n})'))
        if len(self.vm) > n: self.vm = self.vm[len(self.vm) - n:] if n else []
    def wait_vm_tag(self, tag):
        idx = [i for i, (t, d) in enumerate(self.vm) if t == tag]
        if idx:
            n = len(self.vm) - 1 - idx[-1]
            self.wait_vm(min(n, 63))
    def wait_all(self, vm=None):
        s = 's_waitcnt '
        if vm is not None:
            s += f'vmcnt({vm}) '
            if len(self.vm) > vm: self.vm = self.vm[len(self.vm) - vm:] if vm else []
        s += 'lgkmcnt(0)'
        self.lg = []
        self.ins.append(Ins(s))
    def I(self, text, tag=None):
        for line in text.split('\n'):
            line = line.strip()
            if not line: continue
            if line.startswith(';'): self.ins.append(line); continue
            x = Ins(line)
            if x.kind == 'label': self.ins.append(x); continue
            touched = x.vd | x.vs
            need = -1
            for i, d in enumerate(self.lg):
                if d & touched: need = i
            if need >= 0: self.wait_lg(len(self.lg) - 1 - need)
            if self.track_vm:
                need = -1
                for i, (t, d) in enumerate(self.vm):
                    if d & touched: need = i
                if need >= 0: self.wait_vm(min(63, len(self.vm) - 1 - need))
            if x.op == 's_waitcnt':
                m = re.search(r'lgkmcnt\((\d+)\)', line)
                if m:
                    n = int(m.group(1))
                    if len(self.lg) > n: self.lg = self.lg[len(self.lg) - n:] if n else []
                m = re.search(r'vmcnt\((\d+)\)', line)
                if m:
                    n = int(m.group(1))
                    if len(self.vm) > n: self.vm = self.vm[len(self.vm) - n:] if n else []
            self.ins.append(x)
            if x.kind == 'ds': self.lg.append(set(x.vd))
            if x.kind == 'smem':
                self.lg.append(set())
            if x.kind == 'vmem' and self.track_vm: self.vm.append((tag, set(x.vd)))
    def lines(self, L, tag=None):
        for l in L: self.I(l, tag)
    def state(self): return ([set(d) for d in self.lg], [(t, set(d)) for t, d in self.vm])
    def set_state(self, st): self.lg = [set(d) for d in st[0]]; self.vm = [(t, set(d)) for t, d in st[1]]
    def assert_state(self, st, what=''):
        assert self.lg == st[0], f'lg state mismatch {what}: {self.lg} vs {st[0]}'
        assert [(t, d) for t, d in self.vm] == [(t, d) for t, d in st[1]], f'vm state mismatch {what}\n{self.vm}\n{st[1]}'
    def text(self):
        out = []
        for x in self.ins:
            if isinstance(x, str): out.append(x)
            elif x.kind == 'label': out.append(x.text)
            else: out.append('    ' + x.text)
        return '\n'.join(out) + '\n'

def weave(A, mf, gaps, tag=None):
    assert len(gaps) <= len(mf) + 1
    for i, m in enumerate(mf):
        A.I(m, tag)
        if i < len(gaps):
            for g in gaps[i]: A.I(g, tag)
    if len(gaps) > len(mf):
        for g in gaps[len(mf)]: A.I(g, tag)

def spread(items, n, start=0, end=None):
    if end is None: end = n
    g = [[] for _ in range(n)]
    k = end - start
    for j, it in enumerate(items):
        g[start + (j * k) // max(1, len(items))].append(it)
    return g

def merge_gaps(*gs):
    n = max(len(g) for g in gs)
    out = [[] for _ in range(n)]
    for i in range(n):
        ls = [list(g[i]) for g in gs if i < len(g)]
        while any(ls):
            for l in ls:
                if l: out[i].append(l.pop(0))
    return out

def required(prod, cons):
    r = 0
    pk, ck = prod.kind, cons.kind
    if pk == 'valu':
        if ck == 'mfma' and (prod.vd & cons.vs): r = max(r, 2)
        if ck == 'valu':
            if cons.op.startswith('v_permlane') and (prod.vd & cons.vs): r = max(r, 2)
            if cons.op.startswith(('v_readfirstlane', 'v_readlane')) and (prod.vd & cons.vs): r = max(r, 1)
            if prod.op in TRANS and cons.op not in TRANS and (prod.vd & cons.vs): r = max(r, 1)
            if prod.sd & cons.ss: r = max(r, 2)
            if prod.sd & cons.ss and cons.op.startswith(('v_readlane', 'v_writelane')): r = max(r, 4)
        if prod.op in TRANS and ck in ('mfma', 'ds', 'vmem') and (prod.vd & cons.vs): r = max(r, 2)
        if ck == 'vmem' and (prod.sd & cons.ss): r = max(r, 5)
        if ck == 'mfma' and (prod.sd & {'exec_lo', 'exec_hi'}): r = max(r, 4)
    if pk == 'mfma':
        n = {8: 12, 4: 8}[prod.passes]
        if ck == 'mfma':
            if prod.vd & (cons.cA | cons.cB): r = max(r, n)
            if prod.vd & cons.cC:
                if not (prod.vd == cons.cC and prod.passes == cons.passes): r = max(r, n - 2)
        elif ck in ('valu', 'ds', 'vmem'):
            if prod.vd & (cons.vs | cons.vd): r = max(r, n)
            if ck == 'valu' and (prod.cC & cons.vd): r = max(r, {8: 7, 4: 3}[prod.passes])
    if pk == 'vmem' and prod.op.endswith(('x4', 'x3')) and 'store' in prod.op:
        data = regs_of(prod.toks[0] if prod.op.startswith('buffer') else prod.toks[1])[1]
        if data & cons.vd: r = max(r, 2 if ck == 'valu' else 1)
    if pk == 'salu' and 'm0' in prod.sd and ck == 'vmem' and getattr(cons, 'lds', False): r = max(r, 1)
    return r

def check_hazards(A, fix=True, verbose=True):
    changed = True
    nfix = 0
    while changed:
        changed = False
        ins = A.ins
        idx = [i for i, x in enumerate(ins) if not isinstance(x, str)]
        labels = {ins[i].label: i for i in idx if ins[i].kind == 'label'}
        prev_real = {}
        last = None
        for i in idx:
            prev_real[i] = last; last = i
        jumps_to = {}
        for i in idx:
            x = ins[i]
            if x.kind == 'salu' and (x.op.startswith('s_cbranch') or x.op == 's_branch'):
                jumps_to.setdefault(labels[x.toks[0]], []).append(i)
        def preds(i):
            p = []
            j = prev_real[i]
            if j is not None and not (ins[j].kind == 'salu' and ins[j].op in ('s_branch', 's_endpgm')): p.append(j)
            if ins[i].kind == 'label': p += jumps_to.get(i, [])
            return p
        for i in idx:
            c = ins[i]
            if c.kind in ('label',): continue
            stack = [(p, 0) for p in preds(i)]
            seen = {}
            worst = 0; who = None
            while stack:
                j, d = stack.pop()
                if d >= 20: continue
                if seen.get(j, 99) <= d: continue
                seen[j] = d
                x = ins[j]
                if x.kind != 'label':
                    r = required(x, c)
                    if r - d > worst: worst, who = r - d, x
                    nd = d + x.ws
                else: nd = d
                for p in preds(j): stack.append((p, nd))
            if worst > 0:
                if verbose: print(f'hazard: need {worst} more before "{c.text}" (producer "{who.text}")')
                if not fix: continue
                ins.insert(i, Ins(f's_nop {worst - 1}'))
                nfix += 1
                changed = True
                break
    return nfix
```

```python
import sys, os
sys.path.insert(0, os.path.dirname(os.path.abspath(__file__)))
from asmlib import *
import k1, k2
KN = k1.KN
HDR = open('cdna_kernels/' + KN + '.s.ref').read().split('; @launch')[0]

def build2(opt=None, verbose=True):
    opt = opt or {}
    A1 = Asm(); k1.K1(A1, kvpol=opt.get('kvpol', 'nt'), opt=opt).gen('mha_k1_kernel')
    n1 = check_hazards(A1, verbose=verbose)
    A2 = Asm(); k2.K2(A2, opt=opt).gen('mha_k2_kernel')
    n2 = check_hazards(A2, verbose=verbose)
    s = HDR
    s += '; @launch kernel=mha_k1_kernel grid=(256,1,1) block=(512,1,1) lds=163840\n'
    s += '; @launch kernel=mha_k2_kernel grid=(256,1,1) block=(512,1,1) lds=131072\n'
    s += '.amdgcn_target "amdgcn-amd-amdhsa--gfx950"\n.text\n'
    s += A1.text() + A2.text()
    s += '.section .rodata,"a"\n.p2align 6\n' + k1.desc('mha_k1_kernel', 256) + '.p2align 6\n' + k1.desc('mha_k2_kernel', 152)
    return s

if __name__ == '__main__':
    out = sys.argv[1] if len(sys.argv) > 1 else 'cdna_kernels/' + KN + '.s'
    s = build2()
    open(out, 'w').write(s)
    print('written', out, len(s))
```

```python
from asmlib import *

KN = 'concat_heads__mha_block_cached__mha_block_cached__near_ridge'

def vr(a, n=4): return f'v[{a}:{a+n-1}]'
ACC = lambda db: 16 * db
QF = lambda m: 64 + 4 * m
SA, SB, NEGM = 96, 112, 128
KF = lambda m: 144 + 4 * m
VF = lambda i: 176 + 4 * i
PA, PB = 208, 216
KA = lambda m: 224 + m
VA = lambda d: 232 + d
LA, LB = 236, 237
T = lambda i: 238 + i
VDK = lambda i: 246 + i
VDV = 250
TID = 255
AF = lambda buf, db: 144 + 16 * buf + 4 * db
BF = lambda buf: 176 + 4 * buf
AW = lambda d: 224 + d
AX = lambda k: 228 + k
VDW = lambda i: 96 + i
VDX = lambda i: 100 + i

SK, SV, SW, SX, SWS, SWO = 4, 8, 12, 16, 20, 80
sWV, sW_, sGRP, sB, sH, sBR = 24, 25, 26, 27, 28, 29
sLW = 30
sSTEP = 31
sCSEQ, sDSEQ, sDMASK, sWMASK = 32, 33, 34, 35
sCUR, sDELTA, sSOFA, sSOFB = 36, 37, 38, 39
sTHR, sFLOOR, sCAP = 40, 41, 42
sSOFK, sKMASK, sKSEQ = 43, 77, 78
sT0, sT1, sT2, sT3 = 44, 45, 46, 47

def seq(l):
    v = 0
    for i, s in enumerate(l): v |= s << (4 * i)
    return v

MF = 'v_mfma_f32_32x32x16_bf16'

def srd(base): return f's[{base}:{base+3}]'

class K1:
    def __init__(self, A, kvpol='nt', opt=None):
        self.A = A; self.kvpol = kvpol; self.opt = opt or {}

    def stamp_init(self):
        if not self.opt.get('stamps'): return
        A = self.A
        A.I(f'v_and_b32 v251, 63, v{TID}')
        A.I('v_mov_b32 v252, 0')
        A.I('s_mov_b32 s76, 0')
    def stamp_take(self, reg):
        if not self.opt.get('stamps'): return
        self.A.ins.append(Ins(f'{"s_memtime" if self.opt.get("cyc") else "s_memrealtime"} s[{reg}:{reg+1}]'))
    def stamp_rec(self, reg):
        if not self.opt.get('stamps'): return
        A = self.A
        A.I('v_cmp_eq_u32 vcc, s76, v251')
        A.I(f'v_mov_b32 v253, s{reg}')
        A.I('s_add_u32 s76, s76, 1')
        A.I('v_cndmask_b32 v252, v252, v253, vcc')
    def stamp_now(self):
        if not self.opt.get('stamps'): return
        self.stamp_take(72)
        self.A.I('s_waitcnt lgkmcnt(0)')
        self.stamp_rec(72)
    def bar(self):
        self.A.I('s_barrier')
        self.stamp_now()
    def stamp_dump(self):
        if not self.opt.get('stamps'): return
        A = self.A
        A.I('s_lshl_b32 s44, s2, 3')
        A.I(f's_add_u32 s44, s44, s{sWV}')
        A.I('s_lshl_b32 s44, s44, 8')
        A.I('s_add_u32 s44, s44, 0x8000000')
        A.I('v_lshlrev_b32 v253, 2, v251')
        A.I(f'buffer_store_dword v252, v253, {srd(SWS)}, s44 offen')

    def lane_consts(self):
        A = self.A
        A.I(f'v_and_b32 v{T(0)}, 63, v{TID}')
        A.I(f'v_lshrrev_b32 v{T(1)}, 4, v{T(0)}')
        A.I(f'v_lshrrev_b32 v{T(2)}, 5, v{T(0)}')
        A.I(f'v_bfe_u32 v{T(3)}, v{T(0)}, 2, 2')
        A.I(f'v_and_b32 v{T(4)}, 3, v{T(0)}')

    def kv_dma_offsets(self):
        A = self.A
        l, g = T(0), T(1)
        t = T(5)
        A.I(f'v_and_b32 v{l}, 63, v{TID}')
        A.I(f'v_lshrrev_b32 v{g}, 4, v{l}')
        A.I(f's_lshl_b32 s{sT0}, s{sW_}, 12')
        A.I(f'v_lshlrev_b32 v{T(2)}, 8, v{g}')
        A.I(f'v_add_u32 v{T(2)}, s{sT0}, v{T(2)}')
        A.I(f'v_and_b32 v{T(3)}, 15, v{l}')
        for i in range(4):
            A.I(f'v_add_u32 v{t}, {4*i}, v{g}')
            A.I(f'v_xor_b32 v{t}, v{t}, v{T(3)}')
            A.I(f'v_lshl_add_u32 v{VDK(i)}, v{t}, 4, v{T(2)}')
        A.I(f'v_lshlrev_b32 v{t}, 2, v{g}')
        A.I(f'v_xor_b32 v{t}, v{t}, v{T(3)}')
        A.I(f'v_lshl_add_u32 v{VDV}, v{t}, 4, v{T(2)}')

    def kv_dma(self, slot_sgpr, soff_sgpr, half):
        L = []
        pol = self.kvpol
        if half == 0:
            L.append(f's_add_u32 m0, s{slot_sgpr}, s{sLW}')
            L.append('s_nop 0')
            for i in range(4): L.append(f'buffer_load_dwordx4 v{VDK(i)}, {srd(SK)}, s{soff_sgpr} offen offset:{i*1024} {pol} lds')
        else:
            L.append(f's_add_u32 m0, s{slot_sgpr}, s{sLW}')
            L.append('s_add_u32 m0, m0, 0x4000')
            L.append('s_nop 0')
            for i in range(4): L.append(f'buffer_load_dwordx4 v{VDV}, {srd(SV)}, s{soff_sgpr} offen offset:{i*1024} {pol} lds')
        return L

    def aux_dma_offsets(self):
        A = self.A
        l, g = T(0), T(1)
        t = T(5)
        A.I(f'v_and_b32 v{l}, 63, v{TID}')
        A.I(f'v_lshrrev_b32 v{g}, 4, v{l}')
        A.I(f'v_and_b32 v{T(3)}, 15, v{l}')
        A.I(f'v_lshlrev_b32 v{t}, 2, v{g}')
        A.I(f'v_xor_b32 v{t}, v{t}, v{T(3)}')
        A.I(f'v_lshlrev_b32 v{t}, 4, v{t}')
        A.I(f'v_lshl_add_u32 v{t}, v{g}, 13, v{t}')
        A.I(f's_lshl_b32 s{sT0}, s{sW_}, 17')
        A.I(f'v_add_u32 v{VDW(0)}, s{sT0}, v{t}')
        for i in range(1, 4):
            A.I(f'v_add_u32 v{VDW(i)}, {i*(4*8192-1024)}, v{VDW(0)}')
        A.I(f'v_lshrrev_b32 v{T(2)}, 3, v{l}')
        A.I(f'v_lshlrev_b32 v{T(2)}, 10, v{T(2)}')
        A.I(f's_lshl_b32 s{sT0}, s{sW_}, 15')
        A.I(f'v_add_u32 v{T(2)}, s{sT0}, v{T(2)}')
        A.I(f'v_and_b32 v{T(3)}, 7, v{l}')
        for i in range(4):
            A.I(f'v_add_u32 v{t}, {4*i}, v{g}')
            A.I(f'v_and_b32 v{t}, 7, v{t}')
            A.I(f'v_xor_b32 v{t}, v{t}, v{T(3)}')
            A.I(f'v_lshl_add_u32 v{VDX(i)}, v{t}, 4, v{T(2)}')
            if i: A.I(f'v_add_u32 v{VDX(i)}, {i*(8192-1024)}, v{VDX(i)}')

    def aux_dma(self, slot_sgpr, half):
        L = []
        if half == 0:
            L.append(f's_add_u32 m0, s{slot_sgpr}, s{sLW}')
            L.append('s_nop 0')
            for i in range(4): L.append(f'buffer_load_dwordx4 v{VDW(i)}, {srd(SW)}, s{sSOFA} offen offset:{i*1024} {self.opt.get("wpol","")} lds')
        else:
            L.append(f's_add_u32 m0, s{slot_sgpr}, s{sLW}')
            L.append('s_add_u32 m0, m0, 0x4000')
            L.append('s_nop 0')
            for i in range(4): L.append(f'buffer_load_dwordx4 v{VDX(i)}, {srd(SX)}, s{sSOFB} offen offset:{i*1024} {self.opt.get("xpol","")} lds')
        return L

    def aux_advance(self):
        return [f's_add_u32 s{sSOFA}, s{sSOFA}, {64*8192}', f's_add_u32 s{sSOFB}, s{sSOFB}, 128']

    def qp_read_addrs(self):
        A = self.A
        self.lane_consts()
        l, g, hi, r, c = T(0), T(1), T(2), T(3), T(4)
        t = T(5)
        u = AX(0)
        A.I(f'v_lshl_add_u32 v{t}, v{hi}, 3, v{r}')
        A.I(f'v_lshlrev_b32 v{t}, 8, v{t}')
        A.I(f'v_add_u32 v{t}, s{sCUR}, v{t}')
        A.I(f'v_and_b32 v{u}, 1, v{g}')
        A.I(f'v_lshlrev_b32 v{u}, 5, v{u}')
        A.I(f'v_add_u32 v{t}, v{t}, v{u}')
        A.I(f'v_and_b32 v{u}, 1, v{c}')
        A.I(f'v_lshl_add_u32 v{t}, v{u}, 4, v{t}')
        A.I(f'v_lshrrev_b32 v{u}, 1, v{c}')
        A.I(f'v_lshl_add_u32 v{t}, v{u}, 3, v{t}')
        for db in range(4):
            A.I(f'v_xor_b32 v{u}, {db}, v{r}')
            A.I(f'v_lshl_add_u32 v{AW(db)}, v{u}, 6, v{t}')
        A.I(f'v_and_b32 v{t}, 31, v{l}')
        A.I(f'v_bfe_u32 v{r}, v{t}, 1, 3')
        A.I(f's_lshl_b32 s{sT0}, s{sW_}, 12')
        A.I(f's_add_u32 s{sT0}, s{sT0}, s{sCUR}')
        A.I(f's_add_u32 s{sT0}, s{sT0}, 0x4000')
        A.I(f'v_lshlrev_b32 v{t}, 7, v{t}')
        A.I(f'v_add_u32 v{t}, s{sT0}, v{t}')
        for kk in range(4):
            A.I(f'v_add_u32 v{c}, {2*kk}, v{hi}')
            A.I(f'v_xor_b32 v{c}, v{c}, v{r}')
            A.I(f'v_lshl_add_u32 v{AX(kk)}, v{c}, 4, v{t}')

    def at_read_addrs(self):
        A = self.A
        self.lane_consts()
        l, g, hi, r, c = T(0), T(1), T(2), T(3), T(4)
        t = T(5)
        u = LA
        A.I(f'v_lshl_add_u32 v{t}, v{hi}, 2, v{r}')
        A.I(f'v_lshlrev_b32 v{t}, 8, v{t}')
        A.I(f's_add_u32 s{sT0}, s{sCUR}, 0x4000')
        A.I(f'v_add_u32 v{t}, s{sT0}, v{t}')
        A.I(f'v_and_b32 v{u}, 1, v{g}')
        A.I(f'v_lshl_add_u32 v{t}, v{u}, 5, v{t}')
        A.I(f'v_lshrrev_b32 v{u}, 1, v{c}')
        A.I(f'v_lshl_add_u32 v{t}, v{u}, 4, v{t}')
        A.I(f'v_and_b32 v{u}, 1, v{c}')
        A.I(f'v_lshl_add_u32 v{t}, v{u}, 3, v{t}')
        for db in range(4):
            A.I(f'v_xor_b32 v{u}, {db}, v{r}')
            A.I(f'v_lshl_add_u32 v{VA(db)}, v{u}, 6, v{t}')
        A.I(f'v_and_b32 v{t}, 31, v{l}')
        A.I(f'v_and_b32 v{r}, 15, v{l}')
        A.I(f'v_lshlrev_b32 v{t}, 8, v{t}')
        A.I(f'v_add_u32 v{t}, s{sCUR}, v{t}')
        for m in range(8):
            A.I(f'v_add_u32 v{u}, {2*m}, v{hi}')
            A.I(f'v_xor_b32 v{u}, v{u}, v{r}')
            A.I(f'v_lshl_add_u32 v{KA(m)}, v{u}, 4, v{t}')

    def qp_reads(self, kk):
        buf = kk & 1
        L = [f'ds_read_b128 {vr(BF(buf))}, v{AX(kk)}']
        for db in range(4):
            a = AF(buf, db)
            L.append(f'ds_read_b64_tr_b16 {vr(a,2)}, v{AW(db)} offset:{kk*4096}')
            L.append(f'ds_read_b64_tr_b16 {vr(a+2,2)}, v{AW(db)} offset:{kk*4096+1024}')
        return L
    def qp_mfma(self, kk):
        buf = kk & 1
        return [f'{MF} {vr(ACC(db),16)}, {vr(AF(buf,db))}, {vr(BF(buf))}, {vr(ACC(db),16)}' for db in range(4)]

    def skip_block(self, mask, name, body):
        return [f's_bitcmp1_b32 s{mask}, s{sSTEP}', f's_cbranch_scc0 {name}'] + body + [f'{name}:']

    def next_slot(self, seqreg, dst):
        return [f's_and_b32 s{dst}, s{seqreg}, 7', f's_lshl_b32 s{dst}, s{dst}, 15', f's_lshr_b32 s{seqreg}, s{seqreg}, 4']

    def kv_advance(self):
        return [f's_add_u32 s{sSOFK}, s{sSOFK}, 0x4000', f's_cmp_eq_u32 s{sSTEP}, 5',
                f's_cselect_b32 s{sT0}, {hex(15*131072)}, 0', f's_add_u32 s{sSOFK}, s{sSOFK}, s{sT0}']
    def qp_dma_blocks(self, u):
        b0 = self.next_slot(sDSEQ, sT1) + self.skip_block(sDMASK, f'L_qpd0_{u}', self.aux_dma(sT1, 0))
        b1 = self.skip_block(sDMASK, f'L_qpd1_{u}', self.aux_dma(sT1, 1) + self.aux_advance())
        b2 = self.next_slot(sKSEQ, sT2) + self.skip_block(sKMASK, f'L_qpd2_{u}', self.kv_dma(sT2, sSOFK, 0))
        b3 = self.skip_block(sKMASK, f'L_qpd3_{u}', self.kv_dma(sT2, sSOFK, 1) + self.kv_advance())
        return b0, b1, b2, b3

    def qproj(self):
        A = self.A
        A.c('---- QPROJ: entry (barrier already passed; sSTEP=0) ----')
        b0, b1, b2, b3 = self.qp_dma_blocks('e')
        A.lines(b0)
        A.lines(self.qp_reads(0))
        st = A.state()
        A.I('s_branch L_qp_mid')
        A.label('L_qp_loop')
        A.set_state(([], []))
        b0 = self.qp_dma_blocks('l')[0]
        rd = self.qp_reads(0)
        gaps = [rd[0:3], rd[3:6], rd[6:9], b0]
        weave(A, self.qp_mfma(3), gaps)
        A.assert_state(st, 'qp mid')
        A.label('L_qp_mid')
        blk = [b1, b2, b3]
        for kk in range(3):
            rd = self.qp_reads(kk + 1)
            gaps = spread(rd, 4, 0, 3)
            gaps[3] += blk[kk]
            if kk == 2:
                upd = self.next_slot(sCSEQ, sT0) + [f's_sub_u32 s{sDELTA}, s{sT0}, s{sCUR}', f's_mov_b32 s{sCUR}, s{sT0}']
                upd += [f'v_add_u32 v{AW(d)}, s{sDELTA}, v{AW(d)}' for d in range(4)]
                upd += [f'v_add_u32 v{AX(d)}, s{sDELTA}, v{AX(d)}' for d in range(4)]
                gaps[3] += upd
            weave(A, self.qp_mfma(kk), gaps)
        self.stamp_take(72)
        A.wait_all(vm=8)
        self.stamp_rec(74); self.stamp_rec(72)
        A.I('s_barrier')
        self.stamp_take(74)
        A.I(f's_add_u32 s{sSTEP}, s{sSTEP}, 1')
        A.I(f's_cmp_lt_u32 s{sSTEP}, 8')
        A.I('s_cbranch_scc1 L_qp_loop')
        A.lines(self.qp_mfma(3))

    def q_finalize(self):
        A = self.A
        c = (128 ** -0.5) * 1.4426950408889634
        import struct
        cb = struct.unpack('<I', struct.pack('<f', c))[0]
        A.I(f's_mov_b32 s{sT0}, {hex(cb)}')
        for m in range(8):
            base = ACC(m >> 1) + 8 * (m & 1)
            for j in range(8): A.I(f'v_mul_f32 v{base+j}, s{sT0}, v{base+j}')
            for j in range(4): A.I(f'v_cvt_pk_bf16_f32 v{QF(m)+j}, v{base+2*j}, v{base+2*j+1}')

    def k_reads(self, kb): return [f'ds_read_b128 {vr(KF(m))}, v{KA(m)} offset:{kb*8192}' for m in range(8)]
    def v_reads(self, half):
        L = []
        for k2 in range(2):
            kk = 2 * half + k2
            for db in range(4):
                a = VF(k2 * 4 + db)
                L.append((f'ds_read_b64_tr_b16 {vr(a,2)}, v{VA(db)} offset:{kk*4096}',
                          f'ds_read_b64_tr_b16 {vr(a+2,2)}, v{VA(db)} offset:{kk*4096+2048}'))
        return L
    def qk_mfma(self, S):
        return [f'{MF} {vr(S,16)}, {vr(KF(m))}, {vr(QF(m))}, {vr(NEGM,16) if m == 0 else vr(S,16)}' for m in range(8)]
    def pv_mfma(self, P):
        return [f'{MF} {vr(ACC(db),16)}, {vr(VF(k2*4+db))}, {vr(P+4*k2)}, {vr(ACC(db),16)}' for k2 in range(2) for db in range(4)]
    def softmax(self, S, P, lnew, lold, first_from_old=True):
        G = []
        for p in range(8):
            t0, t1 = T(2 * (p & 1)), T(2 * (p & 1) + 1)
            g = [f'v_exp_f32 v{t0}, v{S+2*p}', f'v_exp_f32 v{t1}, v{S+2*p+1}',
                 f'v_add_f32 v{lnew}, v{lold if (p == 0 and first_from_old) else lnew}, v{t0}',
                 f'v_add_f32 v{lnew}, v{lnew}, v{t1}',
                 f'v_cvt_pk_bf16_f32 v{P+p}, v{t0}, v{t1}']
            G.append(g)
        return G
    def check(self, l, name):
        return [f'v_cmp_nge_f32 vcc, s{sTHR}, v{l}', f's_cbranch_vccnz L_fb_{name}', f'L_fbret_{name}:']

    def attn(self):
        A = self.A
        A.c('---- ATTN: entry ----')
        A.lines(self.k_reads(0))
        st = A.state()
        A.I('s_branch L_at_mid')
        A.label('L_at_loop')
        A.set_state(([], []))
        kr = self.k_reads(0)
        gaps = [[kr[i]] for i in range(8)]
        weave(A, self.pv_mfma(PB), gaps)
        A.assert_state(st, 'at mid')
        A.label('L_at_mid')
        kr = self.k_reads(1); vrd = self.v_reads(0)
        gaps = [[kr[m], vrd[m][0], vrd[m][1]] for m in range(8)]
        weave(A, self.qk_mfma(SA), gaps)
        upd = self.next_slot(sCSEQ, sT0) + [f's_sub_u32 s{sDELTA}, s{sT0}, s{sCUR}', f's_mov_b32 s{sCUR}, s{sT0}']
        kupd = [f'v_add_u32 v{KA(m)}, s{sDELTA}, v{KA(m)}' for m in range(8)]
        sm = self.softmax(SA, PA, LA, LB)
        gaps = [upd + kupd, [], sm[0] + sm[1][:2], sm[1][2:] + sm[2], sm[3] + sm[4][:2], sm[4][2:] + sm[5], sm[6], sm[7]]
        weave(A, self.qk_mfma(SB), gaps)
        A.lines(self.check(LA, 'a'))
        vrd = self.v_reads(1)
        sm = self.softmax(SB, PB, LB, LA)
        smf = [x for g in sm for x in g]
        gaps = []
        for i in range(8):
            gaps.append([vrd[i][0], vrd[i][1]])
        sg = spread(smf, 8, 1, 8)
        gaps = [gaps[i] + sg[i] for i in range(8)]
        weave(A, self.pv_mfma(PA), gaps)
        A.lines([f'v_add_u32 v{VA(d)}, s{sDELTA}, v{VA(d)}' for d in range(4)])
        A.lines(self.check(LB, 'b'))
        self.stamp_take(72)
        A.wait_all(vm=0)
        self.stamp_rec(74); self.stamp_rec(72)
        A.I('s_barrier')
        self.stamp_take(74)
        A.I(f's_add_u32 s{sSTEP}, s{sSTEP}, 1')
        A.I(f's_cmp_lt_u32 s{sSTEP}, 8')
        A.I('s_cbranch_scc1 L_at_loop')
        A.lines(self.pv_mfma(PB))

    def fallback(self, name):
        A = self.A
        S, P, lnew, lold = (SA, PA, LA, LB) if name == 'a' else (SB, PB, LB, LA)
        sv = A.state()
        A.set_state(([], []))
        A.label(f'L_fb_{name}')
        r, r2, al = T(0), T(1), T(2)
        A.I('s_nop 7')
        A.I(f'v_max3_f32 v{r}, v{S}, v{S+1}, v{S+2}')
        for i in range(3, 15, 2): A.I(f'v_max3_f32 v{r}, v{r}, v{S+i}, v{S+i+1}')
        A.I(f'v_max_f32 v{r}, v{r}, v{S+15}')
        A.I(f'v_mov_b32 v{r2}, v{r}')
        A.I(f'v_permlane32_swap_b32 v{r}, v{r2}')
        A.I(f'v_max_f32 v{r}, v{r}, v{r2}')
        A.I(f'v_max_f32 v{r}, s{sFLOOR}, v{r}')
        A.I(f'v_sub_f32 v{al}, 0, v{r}')
        A.I(f'v_exp_f32 v{al}, v{al}')
        for i in range(16): A.I(f'v_sub_f32 v{S+i}, v{S+i}, v{r}')
        A.I(f'v_min_f32 v{al}, s{sCAP}, v{al}')
        if name == 'a':
            for i in range(16): A.I(f'v_sub_f32 v{SB+i}, v{SB+i}, v{r}')
        for i in range(16): A.I(f'v_sub_f32 v{NEGM+i}, v{NEGM+i}, v{r}')
        for i in range(64): A.I(f'v_mul_f32 v{i}, v{al}, v{i}')
        A.I(f'v_mul_f32 v{lnew}, v{al}, v{lold}')
        if name == 'b':
            pass
        for g in self.softmax(S, P, lnew, lold, first_from_old=False): A.lines(g)
        A.I(f's_mov_b32 s{sTHR}, 0x46800000')
        A.I(f's_mov_b32 s{sFLOOR}, 0')
        A.I(f's_mov_b32 s{sCAP}, 1.0')
        A.I(f's_branch L_fbret_{name}')
        A.set_state(sv)

    def o_epilogue(self):
        A = self.A
        l2 = T(0)
        A.I(f'v_mov_b32 v{l2}, v{LB}')
        A.I(f'v_permlane32_swap_b32 v{LB}, v{l2}')
        A.I(f'v_add_f32 v{LB}, v{LB}, v{l2}')
        A.I(f'v_rcp_f32 v{LB}, v{LB}')
        A.I(f's_lshl_b32 s{sT0}, s{sBR}, 3')
        A.I(f's_add_u32 s{sT0}, s{sT0}, s{sB}')
        A.I(f's_lshl_b32 s{sT0}, s{sT0}, 2')
        A.I(f's_add_u32 s{sT0}, s{sT0}, s{sW_}')
        A.I(f's_lshl_b32 s{sT0}, s{sT0}, 5')
        A.I(f's_add_u32 s{sT0}, s{sT0}, s{sH}')
        A.I(f's_lshl_b32 s{sT0}, s{sT0}, 13')
        A.I(f'v_and_b32 v{T(1)}, 63, v{TID}')
        A.I(f'v_lshlrev_b32 v{T(1)}, 4, v{T(1)}')
        for f in range(8):
            base = ACC(f >> 1) + 8 * (f & 1)
            d = KF(f)
            for j in range(8): A.I(f'v_mul_f32 v{base+j}, v{LB}, v{base+j}')
            for j in range(4): A.I(f'v_cvt_pk_bf16_f32 v{d+j}, v{base+2*j}, v{base+2*j+1}')
            if f % 4 == 0 and f: pass
            off = f * 1024
            if off < 4096:
                A.I(f'buffer_store_dwordx4 {vr(d)}, v{T(1)}, {srd(SWS)}, s{sT0} offen offset:{off} {self.opt.get("opol","")}')
            else:
                if f == 4: A.I(f's_add_u32 s{sT0}, s{sT0}, 4096')
                A.I(f'buffer_store_dwordx4 {vr(d)}, v{T(1)}, {srd(SWS)}, s{sT0} offen offset:{off-4096} {self.opt.get("opol","")}')

    def gen(self, name):
        A = self.A
        A.raw(f'.globl {name}\n.p2align 8\n.type {name},@function\n{name}:')
        A.I('s_cmp_ge_u32 s2, 256')
        A.I('s_cbranch_scc1 L_k1_end')
        A.I('s_load_dwordx16 s[48:63], s[0:1], 0')
        A.I('s_load_dwordx4 s[64:67], s[0:1], 64')
        A.I('s_load_dwordx2 s[68:69], s[0:1], 96')
        A.I(f'v_mov_b32 v{TID}, v0')
        self.stamp_init()
        self.stamp_now()
        A.I(f'v_lshrrev_b32 v1, 6, v0')
        A.I(f's_and_b32 s{sT0}, s2, 7')
        A.I(f'v_readfirstlane_b32 s{sWV}, v1')
        A.I(f's_lshr_b32 s{sT1}, s2, 3')
        A.I(f's_lshr_b32 s{sBR}, s{sT0}, 2')
        A.I(f's_and_b32 s{sT0}, s{sT0}, 3')
        A.I(f's_lshl_b32 s{sT0}, s{sT0}, 2')
        A.I(f's_lshr_b32 s{sT2}, s{sT1}, 3')
        A.I(f's_add_u32 s{sH}, s{sT0}, s{sT2}')
        A.I(f's_and_b32 s{sB}, s{sT1}, 7')
        A.I(f's_and_b32 s{sW_}, s{sWV}, 3')
        A.I(f's_lshr_b32 s{sGRP}, s{sWV}, 2')
        A.I(f's_lshl_b32 s{sLW}, s{sW_}, 12')
        A.I('s_waitcnt lgkmcnt(0)')
        A.lg = []
        A.I(f's_cmp_eq_u32 s{sBR}, 0')
        for dst, a, b, n in ((SX, 48, 58, 0x100000), (SK, 50, 60, 0x2000000), (SV, 52, 62, 0x2000000), (SW, 54, 64, 0x400000), (SWO, 56, 66, 0x400000)):
            A.I(f's_cselect_b32 s{dst}, s{a}, s{b}')
            A.I(f's_cselect_b32 s{dst+1}, s{a+1}, s{b+1}')
            A.I(f's_mov_b32 s{dst+2}, {hex(n)}')
            A.I(f's_mov_b32 s{dst+3}, 0x20000')
        A.I(f's_mov_b32 s{SWS}, s68\ns_mov_b32 s{SWS+1}, s69\ns_mov_b32 s{SWS+2}, 0x10000000\ns_mov_b32 s{SWS+3}, 0x20000')
        A.I(f's_cmp_eq_u32 s{sGRP}, 0')
        A.I('s_cbranch_scc0 L_y_start')
        if self.opt.get('warm'): self.tlb_warm()
        A.I(f's_mov_b32 s{sCUR}, {2*32768}')
        A.I(f's_mov_b32 s{sCSEQ}, {hex(seq([3,4,2,3,4,2,3,3]))}')
        A.I(f's_mov_b32 s{sDMASK}, 0')
        A.I(f's_mov_b32 s{sKMASK}, 0')
        self.qp_read_addrs()
        for i in range(64): A.I(f'v_mov_b32 v{i}, 0')
        for i in list(range(96, 104)) + list(range(246, 251)): A.I(f'v_mov_b32 v{i}, 0')
        A.I(f's_mov_b32 s{sSOFA}, 0\ns_mov_b32 s{sSOFB}, 0\ns_mov_b32 s{sSOFK}, 0\ns_mov_b32 s{sDSEQ}, 0\ns_mov_b32 s{sKSEQ}, 0')
        self.stamp_now()
        A.I('s_barrier')
        A.I('s_branch L_qp_start')
        A.label('L_y_start')
        self.y_round0()
        A.label('L_qp_start')
        A.I(f's_mov_b32 s{sSTEP}, 0')
        self.stamp_take(74)
        self.qproj()
        A.I(f's_cmp_eq_u32 s{sGRP}, 0')
        A.I(f's_cselect_b32 s{sCUR}, 0, {2*32768}')
        A.I(f's_mov_b32 s{sT0}, {hex(seq([0,1,2,0,1,2,0,0]))}')
        A.I(f's_cselect_b32 s{sCSEQ}, {hex(seq([1,2,0,1,2,0,1,1]))}, s{sT0}')
        self.at_read_addrs()
        A.I(f's_mov_b32 s{sTHR}, -1.0')
        A.I(f's_mov_b32 s{sFLOOR}, 0xff7fffff')
        A.I(f's_mov_b32 s{sCAP}, 0')
        A.I(f'v_mov_b32 v{LB}, 0')
        for i in range(16): A.I(f'v_mov_b32 v{NEGM+i}, 0')
        self.q_finalize()
        if self.opt.get('dumpq'):
            self.dump_q()
        A.I(f's_mov_b32 s{sSTEP}, 0')
        self.stamp_now()
        self.stamp_take(74)
        self.attn()
        A.I('s_nop 7')
        self.stamp_now()
        A.I(f's_cmp_eq_u32 s{sGRP}, 0')
        A.I('s_cbranch_scc0 L_k1_epi')
        self.x_round2()
        A.I('s_branch L_k1_fin')
        A.label('L_k1_epi')
        self.o_epilogue()
        self.stamp_now()
        A.label('L_k1_fin')
        A.I('s_waitcnt vmcnt(0)')
        self.stamp_now()
        self.stamp_dump()
        A.I('s_waitcnt vmcnt(0)')
        A.label('L_k1_end')
        A.I('s_endpgm')
        self.fallback('a')
        self.fallback('b')

    def y_round0(self):
        A = self.A
        A.track_vm = True
        A.vm = []
        self.aux_dma_offsets()
        A.I(f's_lshl_b32 s{sSOFA}, s{sH}, 8')
        A.I(f's_lshl_b32 s{sSOFB}, s{sB}, 17')
        aslot = [2, 3, 4]
        def item(it):
            k = it[0]
            if k == 'a':
                i = int(it[1:])
                A.I(f's_mov_b32 s{sT1}, {aslot[i % 3]*32768}')
                A.lines(self.aux_dma(sT1, 0), it); A.lines(self.aux_dma(sT1, 1), it); A.lines(self.aux_advance())
            elif k == 'b':
                A.I(f's_add_u32 s{sH}, s{sH}, 16')
                A.I(f's_lshl_b32 s{sSOFA}, s{sH}, 8')
                A.I(f's_lshl_b32 s{sSOFB}, s{sB}, 17')
                A.I(f's_mov_b32 s{sT1}, {4*32768}')
                A.lines(self.aux_dma(sT1, 0), it); A.lines(self.aux_dma(sT1, 1), it); A.lines(self.aux_advance())
            elif k in 'KV':
                t = int(it[1:])
                A.I(f's_mov_b32 s{sT1}, {t*32768}')
                half = 0 if k == 'K' else 1
                A.lines(self.kv_dma(sT1, sSOFK, half), it)
                if half == 1: A.I(f's_add_u32 s{sSOFK}, s{sSOFK}, 0x4000')
            elif k == 'o':
                self.kv_dma_offsets()
                A.I(f's_lshl_b32 s{sT0}, s{sB}, 5')
                A.I(f's_add_u32 s{sT0}, s{sT0}, s{sH}')
                A.I(f's_lshl_b32 s{sSOFK}, s{sT0}, 17')
            elif k == 'p':
                self.prefetch(it)
            elif k == 'i':
                A.I(f's_mov_b32 s{sCUR}, {4*32768}')
                A.I(f's_mov_b32 s{sCSEQ}, {hex(seq([3,4,3,4,3,4,3,3]))}')
                A.I(f's_mov_b32 s{sDSEQ}, {hex(seq([3,4,3,4,3,4,3,0]))}')
                A.I(f's_mov_b32 s{sKSEQ}, {hex(seq([2,0,1,2,0,1,2,0]))}')
                A.I(f's_mov_b32 s{sDMASK}, 0x7f')
                A.I(f's_mov_b32 s{sKMASK}, 0xff')
                self.qp_read_addrs()
                for i in range(64): A.I(f'v_mov_b32 v{i}, 0')
            else: raise Exception(it)
        sched = self.opt.get('r0') or {'pre': ['a0', 'a1', 'a2', 'p0', 'p1', 'o'], 0: ['i'], 1: ['a3', 'K0'], 2: ['a4', 'V0'], 3: ['a5', 'K1'],
                                       4: ['a6', 'V1'], 5: ['a7', 'p2'], 6: ['b0'], 7: []}
        sched = {(k if k == 'pre' else int(k)): v for k, v in sched.items()}
        for it in sched['pre']: item(it)
        self.stamp_now()
        A.wait_vm_tag('a0')
        self.bar()
        for s in range(8):
            for it in sched.get(s, []): item(it)
            if s < 7:
                A.wait_vm_tag(f'a{s+1}')
                self.bar()
            else:
                A.wait_vm_tag('b0'); A.wait_vm_tag('K0'); A.wait_vm_tag('V0')
                if self.opt.get('waitkv1', 1): A.wait_vm_tag('K1'); A.wait_vm_tag('V1')
                self.stamp_now()
                A.I('s_barrier')
        A.track_vm = False
        A.vm = []

    def prefetch(self, it):
        A = self.A
        l = T(0); t = T(1)
        A.I(f'v_and_b32 v{l}, 63, v{TID}')
        if it in ('p0', 'p2'):
            A.I(f's_and_b32 s{sT0}, s{sW_}, 1')
            A.I(f's_lshl_b32 s{sT0}, s{sT0}, 5')
            A.I(f's_lshl_b32 s{sT3}, s{sB}, 6')
            A.I(f's_add_u32 s{sT0}, s{sT0}, s{sT3}')
            A.I(f's_lshl_b32 s{sT0}, s{sT0}, 13')
            A.I(f's_lshl_b32 s{sT3}, s{sH}, 8')
            A.I(f's_add_u32 s{sT0}, s{sT0}, s{sT3}')
            if it == 'p2': A.I(f's_add_u32 s{sT0}, s{sT0}, 4096')
            A.I(f'v_lshrrev_b32 v{t}, 1, v{l}')
            A.I(f'v_lshlrev_b32 v{t}, 13, v{t}')
            A.I(f'v_and_b32 v{l}, 1, v{l}')
            A.I(f'v_lshl_add_u32 v{t}, v{l}, 7, v{t}')
            A.I(f'buffer_load_dword v{254 if it == "p0" else 244}, v{t}, {srd(SW)}, s{sT0} offen {self.opt.get("wpol","")}', it)
        else:
            A.I('s_lshr_b32 s%d, s2, 6' % sT3)
            A.I(f's_and_b32 s{sT3}, s{sT3}, 3')
            A.I(f's_lshl_b32 s{sT3}, s{sT3}, 8')
            A.I(f's_lshl_b32 s{sT0}, s{sB}, 17')
            A.I(f's_add_u32 s{sT0}, s{sT0}, s{sT3}')
            A.I(f's_lshl_b32 s{sT3}, s{sW_}, 15')
            A.I(f's_add_u32 s{sT0}, s{sT0}, s{sT3}')
            A.I(f'v_lshrrev_b32 v{t}, 1, v{l}')
            A.I(f'v_lshlrev_b32 v{t}, 10, v{t}')
            A.I(f'v_and_b32 v{l}, 1, v{l}')
            A.I(f'v_lshl_add_u32 v{t}, v{l}, 7, v{t}')
            A.I(f'buffer_load_dword v245, v{t}, {srd(SX)}, s{sT0} offen {self.opt.get("xpol","")}', it)

    def tlb_warm(self):
        A = self.A
        A.I(f'v_and_b32 v{T(0)}, 1, v{TID}')
        A.I(f'v_lshlrev_b32 v{T(0)}, 21, v{T(0)}')
        A.I(f's_lshl_b32 s{sT0}, s{sB}, 5')
        A.I(f's_add_u32 s{sT0}, s{sT0}, s{sH}')
        A.I(f's_lshl_b32 s{sT0}, s{sT0}, 17')
        W = self.opt['warm']
        if 'k' in W: A.I(f'buffer_load_dword v244, v{T(0)}, {srd(SK)}, s{sT0} offen')
        if 'v' in W: A.I(f'buffer_load_dword v245, v{T(0)}, {srd(SV)}, s{sT0} offen')
        if 'o' in W:
            A.I(f's_and_b32 s{sT1}, s2, 3')
            A.I(f's_lshl_b32 s{sT1}, s{sT1}, 20')
            A.I(f'v_mov_b32 v{T(1)}, 0')
            A.I(f'buffer_load_dword v243, v{T(1)}, {srd(SWO)}, s{sT1} offen')
        if 's' in W:
            A.I(f's_lshl_b32 s{sT1}, s{sBR}, 3')
            A.I(f's_add_u32 s{sT1}, s{sT1}, s{sB}')
            A.I(f's_lshl_b32 s{sT1}, s{sT1}, 20')
            A.I(f'v_mov_b32 v{T(1)}, 0')
            A.I(f'buffer_load_dword v242, v{T(1)}, {srd(SWS)}, s{sT1} offen')

    def prefetch_wo(self):
        A = self.A
        A.I(f's_and_b32 s{sT0}, s2, 3')
        A.I(f's_lshl_b32 s{sT0}, s{sT0}, 5')
        A.I(f's_lshr_b32 s{sT3}, s2, 3')
        A.I(f's_add_u32 s{sT0}, s{sT0}, s{sT3}')
        A.I(f's_lshl_b32 s{sT0}, s{sT0}, 2')
        A.I(f's_add_u32 s{sT0}, s{sT0}, s{sW_}')
        A.I(f's_lshl_b32 s{sT0}, s{sT0}, 13')
        A.I(f'v_and_b32 v{T(0)}, 63, v{TID}')
        A.I(f'v_lshlrev_b32 v{T(0)}, 7, v{T(0)}')
        A.I(f'buffer_load_dword v244, v{T(0)}, {srd(SWO)}, s{sT0} offen')

    def x_round2(self):
        A = self.A
        self.kv_dma_offsets()
        A.I(f's_lshl_b32 s{sT0}, s{sB}, 5')
        A.I(f's_add_u32 s{sT0}, s{sT0}, s{sH}')
        A.I(f's_add_u32 s{sT0}, s{sT0}, 16')
        A.I(f's_lshl_b32 s{sSOFK}, s{sT0}, 17')
        A.I(f's_add_u32 s{sSOFK}, s{sSOFK}, 0x8000')
        for s in range(16, 24):
            T_ = s - 6
            if s == self.opt.get('pw', -1):
                self.prefetch_wo()
            if T_ <= 15:
                A.I(f's_mov_b32 s{sT1}, {(T_ % 3)*32768}')
                A.lines(self.kv_dma(sT1, sSOFK, 0)); A.lines(self.kv_dma(sT1, sSOFK, 1))
                A.I(f's_add_u32 s{sSOFK}, s{sSOFK}, 0x4000')
            if s == 16:
                self.o_epilogue()
                self.stamp_now()
            elif s == 17: A.I('s_waitcnt vmcnt(8)')
            elif s <= 21: A.I('s_waitcnt vmcnt(8)')
            elif s == 22: A.I('s_waitcnt vmcnt(0)')
            self.bar()

    def dump_q(self):
        A = self.A
        A.I(f's_lshl_b32 s{sT0}, s{sBR}, 3')
        A.I(f's_add_u32 s{sT0}, s{sT0}, s{sB}')
        A.I(f's_lshl_b32 s{sT0}, s{sT0}, 2')
        A.I(f's_add_u32 s{sT0}, s{sT0}, s{sW_}')
        A.I(f's_lshl_b32 s{sT0}, s{sT0}, 5')
        A.I(f's_add_u32 s{sT0}, s{sT0}, s{sH}')
        A.I(f's_lshl_b32 s{sT0}, s{sT0}, 13')
        A.I(f's_add_u32 s{sT0}, s{sT0}, 0x4000000')
        A.I(f'v_and_b32 v{T(1)}, 63, v{TID}')
        A.I(f'v_lshlrev_b32 v{T(1)}, 4, v{T(1)}')
        for m in range(8):
            if m == 4: A.I(f's_add_u32 s{sT0}, s{sT0}, 4096')
            A.I(f'buffer_store_dwordx4 {vr(QF(m))}, v{T(1)}, {srd(SWS)}, s{sT0} offen offset:{(m&3)*1024}')

def desc(name, vgpr=256, sgpr=102):
    return (f'.amdhsa_kernel {name}\n  .amdhsa_next_free_vgpr {vgpr}\n  .amdhsa_next_free_sgpr {sgpr}\n'
            f'  .amdhsa_accum_offset {((vgpr+3)//4)*4}\n  .amdhsa_group_segment_fixed_size 0\n  .amdhsa_kernarg_size 104\n'
            f'  .amdhsa_user_sgpr_count 2\n  .amdhsa_user_sgpr_kernarg_segment_ptr 1\n  .amdhsa_system_sgpr_workgroup_id_x 1\n'
            f'.end_amdhsa_kernel\n')
```

```python
from asmlib import *
from k1 import vr, srd, MF

ACC = lambda nb, qb: 16 * (2 * nb + qb)
OB = lambda s, qb, k2: 64 + 16 * s + 8 * qb + 4 * k2
AFR = lambda nb, k2: 112 + 8 * k2 + 4 * nb
VW = lambda i: 128 + i
VO = 132
AA = lambda nb: 133 + nb
T = lambda i: 136 + i
TID = 147
SWO, SWS, SOUT = 4, 8, 12
sWV, sBR, sB, sQH, sNT = 24, 25, 26, 27, 28
sLW, sSOFW, sSOFO, sCNT = 29, 30, 31, 32
sT0, sT1, sT2 = 36, 37, 38
sP, sBW, sBO = 39, 40, 41
DEPTH = 3

class K2:
    def __init__(self, A, opt=None):
        self.A = A; self.opt = opt or {}
    def stamp_init(self):
        if not self.opt.get('stamps2'): return
        A = self.A
        A.I('v_and_b32 v148, 63, v0')
        A.I('v_mov_b32 v149, 0')
        A.I('s_mov_b32 s76, 0')
    def stamp(self):
        if not self.opt.get('stamps2'): return
        A = self.A
        from asmlib import Ins
        A.ins.append(Ins('s_memrealtime s[72:73]'))
        A.ins.append(Ins('s_waitcnt lgkmcnt(0)'))
        A.lg = []
        A.I('v_cmp_eq_u32 vcc, s76, v148')
        A.I('v_mov_b32 v150, s72')
        A.I('s_add_u32 s76, s76, 1')
        A.I('v_cndmask_b32 v149, v149, v150, vcc')
    def stamp_dump(self):
        if not self.opt.get('stamps2'): return
        A = self.A
        A.I('s_lshl_b32 s44, s2, 3')
        A.I(f's_add_u32 s44, s44, s{sWV}')
        A.I('s_lshl_b32 s44, s44, 8')
        A.I('s_add_u32 s44, s44, 0x8100000')
        A.I('v_lshlrev_b32 v150, 2, v148')
        A.I(f'buffer_store_dword v149, v150, {srd(SWS)}, s44 offen')
    def issue(self, s):
        L = [f's_add_u32 m0, s{sLW}, {s*4096}', 's_nop 0']
        rot = self.opt.get('rot')
        if not self.opt.get('noW'):
            for i in range(4): L.append(('w', f'buffer_load_dwordx4 v{VW(i)}, {srd(SWO)}, s{sSOFW} offen offset:{i*1024} {self.opt.get("wopol","")} lds'))
        else:
            L += ['s_nop 0'] * 4
        if not self.opt.get('noO'):
            for qb in range(2):
                for k2 in range(2):
                    L.append(('o', f'buffer_load_dwordx4 {vr(OB(s,qb,k2))}, v{VO}, {srd(SWS)}, s{sSOFO if qb == 0 else sT2} offen offset:{k2*1024} {self.opt.get("olpol","")}'))
        if rot is None:
            L.append(f's_add_u32 s{sSOFW}, s{sSOFW}, {32*1024}')
            L.append(f's_add_u32 s{sSOFO}, s{sSOFO}, 2048')
            L.append(f's_add_u32 s{sT2}, s{sT2}, 2048')
        else:
            L.append(f's_add_u32 s{sP}, s{sP}, 1')
            L.append(f's_and_b32 s{sP}, s{sP}, 15')
            L.append(f's_lshl_b32 s{sT0}, s{sP}, 15')
            L.append(f's_add_u32 s{sSOFW}, s{sBW}, s{sT0}')
            L.append(f's_lshl_b32 s{sT0}, s{sP}, 11')
            L.append(f's_add_u32 s{sSOFO}, s{sBO}, s{sT0}')
            L.append(f's_add_u32 s{sT2}, s{sSOFO}, 0x40000')
        return L
    def emit(self, L, tag):
        for x in L:
            if isinstance(x, tuple): self.A.I(x[1], (tag, x[0]))
            else: self.A.I(x)
    def compute(self, s):
        A = self.A
        rd = []
        for k2 in range(2):
            for nb in range(2):
                a = AFR(nb, k2)
                rd.append(f'ds_read_b64_tr_b16 {vr(a,2)}, v{AA(nb)} offset:{s*4096 + k2*2048}')
                rd.append(f'ds_read_b64_tr_b16 {vr(a+2,2)}, v{AA(nb)} offset:{s*4096 + k2*2048 + 1024}')
        A.lines(rd)
        mf = []
        for k2 in range(2):
            for nb in range(2):
                for qb in range(2):
                    mf.append(f'{MF} {vr(ACC(nb,qb),16)}, {vr(AFR(nb,k2))}, {vr(OB(s,qb,k2))}, {vr(ACC(nb,qb),16)}')
        return mf
    def gen(self, name):
        A = self.A
        A.track_vm = True
        A.raw(f'.globl {name}\n.p2align 8\n.type {name},@function\n{name}:')
        A.I('s_cmp_ge_u32 s2, 256')
        A.I('s_cbranch_scc1 L_k2_end')
        self.stamp_init(); self.stamp()
        A.I('s_load_dwordx2 s[48:49], s[0:1], 32')
        A.I('s_load_dwordx2 s[50:51], s[0:1], 72')
        A.I('s_load_dwordx4 s[52:55], s[0:1], 80')
        A.I('s_load_dwordx2 s[56:57], s[0:1], 96')
        A.I('v_lshrrev_b32 v1, 6, v0')
        A.I(f'v_mov_b32 v{TID}, v0')
        A.I(f's_and_b32 s{sT0}, s2, 7')
        A.I(f'v_readfirstlane_b32 s{sWV}, v1')
        A.I(f's_lshr_b32 s{sT1}, s2, 3')
        A.I(f's_lshr_b32 s{sBR}, s{sT0}, 2')
        A.I(f's_and_b32 s{sT0}, s{sT0}, 3')
        A.I(f's_lshl_b32 s{sT0}, s{sT0}, 2')
        A.I(f's_lshr_b32 s{sT2}, s{sT1}, 3')
        A.I(f's_add_u32 s{sT0}, s{sT0}, s{sT2}')
        A.I(f's_lshr_b32 s{sB}, s{sT0}, 1')
        A.I(f's_and_b32 s{sQH}, s{sT0}, 1')
        A.I(f's_and_b32 s{sNT}, s{sT1}, 7')
        A.I(f's_mul_i32 s{sLW}, s{sWV}, {DEPTH*4096}')
        l, g, hi, r, c, t = T(0), T(1), T(2), T(3), T(4), T(5)
        A.I(f'v_and_b32 v{l}, 63, v0')
        A.I(f'v_lshlrev_b32 v{VO}, 4, v{l}')
        A.I(f'v_lshrrev_b32 v{g}, 4, v{l}')
        A.I(f'v_lshrrev_b32 v{hi}, 5, v{l}')
        A.I(f'v_bfe_u32 v{r}, v{l}, 2, 2')
        A.I(f'v_and_b32 v{c}, 3, v{l}')
        A.I(f'v_lshrrev_b32 v{t}, 3, v{l}')
        A.I(f'v_lshlrev_b32 v{VW(0)}, 10, v{t}')
        A.I(f'v_and_b32 v{t}, 1, v{g}')
        A.I(f'v_lshlrev_b32 v{t}, 2, v{t}')
        A.I(f'v_and_b32 v{VW(1)}, 7, v{l}')
        A.I(f'v_xor_b32 v{t}, v{t}, v{VW(1)}')
        A.I(f'v_lshl_add_u32 v{VW(0)}, v{t}, 4, v{VW(0)}')
        for i in range(1, 4): A.I(f'v_add_u32 v{VW(i)}, {i*7168}, v{VW(0)}')
        A.I(f'v_lshl_add_u32 v{t}, v{hi}, 2, v{r}')
        A.I(f'v_lshlrev_b32 v{t}, 7, v{t}')
        A.I(f'v_add_u32 v{t}, s{sLW}, v{t}')
        A.I(f'v_and_b32 v{AA(0)}, 1, v{g}')
        A.I(f'v_lshl_add_u32 v{t}, v{AA(0)}, 5, v{t}')
        A.I(f'v_lshrrev_b32 v{AA(0)}, 1, v{c}')
        A.I(f'v_lshl_add_u32 v{t}, v{AA(0)}, 4, v{t}')
        A.I(f'v_and_b32 v{AA(0)}, 1, v{c}')
        A.I(f'v_lshl_add_u32 v{t}, v{AA(0)}, 3, v{t}')
        A.I(f'v_lshrrev_b32 v{r}, 1, v{r}')
        for nb in range(2):
            A.I(f'v_xor_b32 v{c}, {nb}, v{r}')
            A.I(f'v_lshl_add_u32 v{AA(nb)}, v{c}, 6, v{t}')
        A.I('s_waitcnt lgkmcnt(0)'); A.lg = []
        A.I(f's_cmp_eq_u32 s{sBR}, 0')
        A.I(f's_cselect_b32 s{SWO}, s48, s50\ns_cselect_b32 s{SWO+1}, s49, s51\ns_mov_b32 s{SWO+2}, 0x400000\ns_mov_b32 s{SWO+3}, 0x20000')
        A.I(f's_mov_b32 s{SWS}, s56\ns_mov_b32 s{SWS+1}, s57\ns_mov_b32 s{SWS+2}, 0x10000000\ns_mov_b32 s{SWS+3}, 0x20000')
        A.I(f's_mov_b32 s{SOUT}, s52\ns_mov_b32 s{SOUT+1}, s53\ns_mov_b32 s{SOUT+2}, 0x200000\ns_mov_b32 s{SOUT+3}, 0x20000')
        A.I(f's_lshl_b32 s{sSOFW}, s{sWV}, 19')
        A.I(f's_lshl_b32 s{sT0}, s{sNT}, 7')
        A.I(f's_add_u32 s{sSOFW}, s{sSOFW}, s{sT0}')
        A.I(f's_lshl_b32 s{sT0}, s{sBR}, 3')
        A.I(f's_add_u32 s{sT0}, s{sT0}, s{sB}')
        A.I(f's_lshl_b32 s{sT0}, s{sT0}, 1')
        A.I(f's_add_u32 s{sT0}, s{sT0}, s{sQH}')
        A.I(f's_lshl_b32 s{sT0}, s{sT0}, 19')
        A.I(f's_lshl_b32 s{sT1}, s{sWV}, 15')
        A.I(f's_add_u32 s{sSOFO}, s{sT0}, s{sT1}')
        A.I(f's_add_u32 s{sT2}, s{sSOFO}, 0x40000')
        if self.opt.get('rot') is not None:
            rj, rx = self.opt['rot']
            A.I(f's_mov_b32 s{sBW}, s{sSOFW}')
            A.I(f's_mov_b32 s{sBO}, s{sSOFO}')
            A.I(f's_mul_i32 s{sP}, s{sWV}, {rj}')
            A.I(f's_and_b32 s{sT0}, s2, 7')
            A.I(f's_mul_i32 s{sT0}, s{sT0}, {rx}')
            A.I(f's_add_u32 s{sP}, s{sP}, s{sT0}')
            A.I(f's_and_b32 s{sP}, s{sP}, 15')
            A.I(f's_lshl_b32 s{sT0}, s{sP}, 15')
            A.I(f's_add_u32 s{sSOFW}, s{sBW}, s{sT0}')
            A.I(f's_lshl_b32 s{sT0}, s{sP}, 11')
            A.I(f's_add_u32 s{sSOFO}, s{sBO}, s{sT0}')
            A.I(f's_add_u32 s{sT2}, s{sSOFO}, 0x40000')
        self.stamp()
        for s in range(DEPTH): self.emit(self.issue(s), s)
        self.stamp()
        for i in range(64): A.I(f'v_mov_b32 v{i}, 0')
        NP = 16
        def piece(s, do_issue):
            A.wait_vm_tag((s, 'w' if self.opt.get('noO') else 'o'))
            self.stamp()
            mf = self.compute(s)
            if do_issue:
                iss = self.issue(s)
                A.lines(mf[:4])
                A.wait_lg(0)
                A.I(mf[4])
                dma = [x for x in iss if not (isinstance(x, tuple) and x[0] == 'o')]
                oo = [x for x in iss if isinstance(x, tuple) and x[0] == 'o']
                d1 = dma[:6]; adv = dma[6:]
                self.emit(d1[:4], s); A.I(mf[5]); self.emit(d1[4:], s); A.I(mf[6]); A.I(mf[7])
                self.emit(oo, s); self.emit(adv, s)
            else:
                A.lines(mf)
        A.I(f's_mov_b32 s{sCNT}, 0')
        st = A.state()
        A.label('L_k2_loop')
        for s in range(DEPTH): piece(s, True)
        A.assert_state(st, 'k2 loop')
        A.I(f's_add_u32 s{sCNT}, s{sCNT}, 1')
        A.I(f's_cmp_lt_u32 s{sCNT}, 4')
        A.I('s_cbranch_scc1 L_k2_loop')
        piece(0, True)
        piece(1, False); piece(2, False); piece(0, False)
        A.track_vm = False
        self.stamp()
        A.I('s_barrier')
        self.stamp()
        l, q, t = T(0), T(1), T(2)
        A.I(f'v_and_b32 v{l}, 63, v{TID}')
        A.I(f'v_and_b32 v{q}, 31, v{l}')
        A.I(f'v_lshrrev_b32 v{T(3)}, 5, v{l}')
        A.I(f's_lshl_b32 s{sT0}, s{sWV}, 14')
        for qb in range(2):
            for nb in range(2):
                for r4 in range(4):
                    A.I(f'v_add_u32 v{t}, {8*nb+2*r4}, v{T(3)}')
                    A.I(f'v_and_b32 v{T(4)}, 7, v{q}')
                    A.I(f'v_xor_b32 v{t}, v{t}, v{T(4)}')
                    A.I(f'v_lshlrev_b32 v{t}, 4, v{t}')
                    A.I(f'v_lshl_add_u32 v{t}, v{q}, 8, v{t}')
                    A.I(f'v_add_u32 v{t}, s{sT0}, v{t}')
                    a = ACC(nb, qb) + 4 * r4
                    A.I(f'ds_write_b128 v{t}, {vr(a)} offset:{qb*8192}')
        A.wait_lg(0)
        A.I('s_barrier')
        A.I(f'v_lshrrev_b32 v{q}, 3, v{TID}')
        A.I(f'v_and_b32 v{T(3)}, 7, v{TID}')
        A.I(f'v_and_b32 v{T(4)}, 7, v{q}')
        for e in range(2):
            A.I(f'v_lshl_add_u32 v{t}, v{T(3)}, 1, {e}')
            A.I(f'v_xor_b32 v{t}, v{t}, v{T(4)}')
            A.I(f'v_lshlrev_b32 v{t}, 4, v{t}')
            A.I(f'v_lshl_add_u32 v{T(5+e)}, v{q}, 8, v{t}')
        for j in range(8):
            for e in range(2):
                off = j * 16384
                A.I(f'ds_read_b128 {vr(8*j+4*e)}, v{T(5+e)} offset:{off}' if off < 65536 else
                    f'ds_read_b128 {vr(8*j+4*e)}, v{T(7+e)} offset:{off-65536}')
            if j == 3:
                A.I(f'v_add_u32 v{T(7)}, 0x10000, v{T(5)}')
                A.I(f'v_add_u32 v{T(8)}, 0x10000, v{T(6)}')
        for j in range(1, 8):
            for i in range(8): A.I(f'v_add_f32 v{i}, v{i}, v{8*j+i}')
        for i in range(4): A.I(f'v_cvt_pk_bf16_f32 v{64+i}, v{2*i}, v{2*i+1}')
        A.I(f's_lshl_b32 s{sT0}, s{sB}, 1')
        A.I(f's_add_u32 s{sT0}, s{sT0}, s{sQH}')
        A.I(f's_lshl_b32 s{sT0}, s{sT0}, 17')
        A.I(f's_lshl_b32 s{sT1}, s{sBR}, 10')
        A.I(f's_add_u32 s{sT0}, s{sT0}, s{sT1}')
        A.I(f's_lshl_b32 s{sT1}, s{sNT}, 7')
        A.I(f's_add_u32 s{sT0}, s{sT0}, s{sT1}')
        A.I(f'v_lshlrev_b32 v{t}, 11, v{q}')
        A.I(f'v_lshl_add_u32 v{t}, v{T(3)}, 4, v{t}')
        A.I(f'buffer_store_dwordx4 v[64:67], v{t}, {srd(SOUT)}, s{sT0} offen')
        self.stamp()
        A.I('s_waitcnt vmcnt(0)')
        self.stamp()
        self.stamp_dump()
        A.I('s_waitcnt vmcnt(0)')
        A.label('L_k2_end')
        A.I('s_endpgm')
```

```python
import sys, os
sys.path.insert(0, os.path.dirname(os.path.abspath(__file__)))
from asmlib import *
import k1, k2
KN = k1.KN
HDR = open('cdna_kernels/' + KN + '.s.ref').read().split('; @launch')[0]

def build2(opt=None, verbose=True):
    opt = opt or {}
    A1 = Asm(); k1.K1(A1, kvpol=opt.get('kvpol', 'nt'), opt=opt).gen('mha_k1_kernel')
    n1 = check_hazards(A1, verbose=verbose)
    A2 = Asm(); k2.K2(A2, opt=opt).gen('mha_k2_kernel')
    n2 = check_hazards(A2, verbose=verbose)
    s = HDR
    s += '; @launch kernel=mha_k1_kernel grid=(256,1,1) block=(512,1,1) lds=163840\n'
    s += '; @launch kernel=mha_k2_kernel grid=(256,1,1) block=(512,1,1) lds=131072\n'
    s += '.amdgcn_target "amdgcn-amd-amdhsa--gfx950"\n.text\n'
    s += A1.text() + A2.text()
    s += '.section .rodata,"a"\n.p2align 6\n' + k1.desc('mha_k1_kernel', 256) + '.p2align 6\n' + k1.desc('mha_k2_kernel', 152)
    return s

if __name__ == '__main__':
    out = sys.argv[1] if len(sys.argv) > 1 else 'cdna_kernels/' + KN + '.s'
    s = build2()
    open(out, 'w').write(s)
    print('written', out, len(s))

def buildf(opt=None, verbose=True):
    import f2
    opt = opt or {}
    A1 = Asm(); f2.F2(A1, kvpol=opt.get('kvpol', 'nt'), opt=opt).gen(KN + '_kernel')
    check_hazards(A1, verbose=verbose)
    s = HDR
    s += '; @launch grid=(256,1,1) block=(512,1,1) lds=163840\n'
    s += '.amdgcn_target "amdgcn-amd-amdhsa--gfx950"\n.text\n'
    s += A1.text()
    s += '.section .rodata,"a"\n.p2align 6\n' + k1.desc(KN + '_kernel', 256)
    return s
```

```python
from asmlib import *
import k1
from k1 import *

SDBG, SOUT = 84, 88
sKQ, sNT, sOFL, sOF16, sPC = 92, 93, 94, 95, 96
sOBASE, sI123, sSLOT, sHB = 97, 98, 99, 79
PBASE = 0x2000000
OA, OBF, OC = 144, 176, 64
AB = lambda k: 96 + 16 * (k % 3)
AWO = lambda nb: 232 + nb
VDWO = lambda i: 224 + i
VL16 = 228
VPOLL = 229
VFLAG = 230
VP4 = 208
sMB = 3
MBASE = 0x3000000
SPIN = 400000

class F2(K1):
    def arm_init(self):
        A = self.A
        A.I(f's_cmp_eq_u32 s{sW_}, 0')
        A.I('s_cbranch_scc0 L_ni')
        A.I(f'v_and_b32 v{T(0)}, 63, v{TID}')
        A.I(f'v_lshlrev_b32 v{T(0)}, 2, v{T(0)}')
        A.I(f'v_mov_b32 v{T(1)}, 0')
        A.I('s_mov_b64 exec, 0xfff')
        A.I(f'buffer_store_dword v{T(1)}, v{T(0)}, {srd(SWS)}, s{sMB} offen sc1')
        A.I('s_mov_b64 exec, -1')
        A.label('L_ni')
    def arm_set(self):
        A = self.A
        A.I(f's_cmp_eq_u32 s{sWV}, 0')
        A.I('s_cbranch_scc0 L_na')
        A.I('s_waitcnt vmcnt(0)')
        A.I(f's_add_u32 s{sT0}, s{sOFL}, s{sNT}')
        A.I(f'v_mov_b32 v{T(0)}, 1')
        A.I('s_mov_b64 exec, 1')
        A.I(f'buffer_store_byte v{T(0)}, off, {srd(SDBG)}, s{sT0} sc1')
        A.I('s_mov_b64 exec, -1')
        A.label('L_na')
    def arm_issue(self):
        A = self.A
        tv = A.track_vm; A.track_vm = False
        A.I(f's_cmp_eq_u32 s{sW_}, 0')
        A.I('s_cbranch_scc0 L_ai_d')
        A.I(f'buffer_load_dwordx4 v[{VP4}:{VP4+3}], off, {srd(SDBG)}, s{sOF16} sc1')
        A.label('L_ai_d')
        A.track_vm = tv
    def arm_check(self, nafter):
        A = self.A
        tv = A.track_vm; A.track_vm = False
        st = A.state()
        A.I(f's_cmp_eq_u32 s{sW_}, 0')
        A.I('s_cbranch_scc0 L_ac_d')
        A.I(f's_mov_b32 s{sPC}, {SPIN}')
        A.I(f's_waitcnt vmcnt({nafter})')
        A.I('s_branch L_ac_c')
        A.label('L_ac_l')
        A.I(f'buffer_load_dwordx4 v[{VP4}:{VP4+3}], off, {srd(SDBG)}, s{sOF16} sc1')
        A.I('s_waitcnt vmcnt(0)')
        A.label('L_ac_c')
        A.I(f'v_and_b32 v{VP4}, v{VP4}, v{VP4+1}')
        A.I(f'v_and_b32 v{VP4+2}, v{VP4+2}, v{VP4+3}')
        A.I(f'v_and_b32 v{VP4}, v{VP4}, v{VP4+2}')
        A.I(f'v_readfirstlane_b32 s{sT0}, v{VP4}')
        A.I(f's_cmp_eq_u32 s{sT0}, 0x01010101')
        A.I('s_cbranch_scc1 L_ac_d')
        A.I(f's_sub_u32 s{sPC}, s{sPC}, 1')
        A.I('s_cbranch_scc0 L_ac_l')
        A.label('L_ac_d')
        A.track_vm = tv; A.set_state(st)
    def flag(self, stage, name):
        A = self.A
        A.I(f's_cmp_eq_u32 s{sW_}, 0')
        A.I(f's_cbranch_scc0 L_nf_{name}')
        A.I(f'v_and_b32 v{VFLAG}, 63, v{TID}')
        if stage < 2:
            A.I(f'v_lshlrev_b32 v{VFLAG}, 8, v{VFLAG}')
            A.I(f's_lshl_b32 s{sT0}, s{sNT}, 8')
            A.I(f's_sub_u32 s{sT0}, s{sMB}, s{sT0}')
            A.I(f's_lshl_b32 s{sT1}, s{sNT}, 2')
        else:
            A.I(f'v_lshlrev_b32 v{VFLAG}, 10, v{VFLAG}')
            A.I(f's_lshl_b32 s{sT0}, s{sKQ}, 10')
            A.I(f's_sub_u32 s{sT0}, s{sMB}, s{sT0}')
            A.I(f's_lshl_b32 s{sT1}, s{sKQ}, 2')
        A.I(f's_add_u32 s{sT0}, s{sT0}, s{sT1}')
        A.I(f'v_mov_b32 v{VFLAG+1}, 1')
        A.I('s_mov_b64 exec, 15')
        tv = A.track_vm; A.track_vm = False
        A.I(f'buffer_store_dword v{VFLAG+1}, v{VFLAG}, {srd(SWS)}, s{sT0} offen offset:{16*stage} sc1')
        A.track_vm = tv
        A.I('s_mov_b64 exec, -1')
        A.label(f'L_nf_{name}')
    def poll_issue(self, stage, tag=None):
        self.A.I(f'buffer_load_dwordx4 v[{VP4}:{VP4+3}], off, {srd(SWS)}, s{sMB} offset:{16*stage} sc1', tag)
    def poll_check(self, stage, name, first_issued):
        A = self.A
        tv = A.track_vm
        st = A.state()
        A.I(f's_mov_b32 s{sPC}, {SPIN}')
        if first_issued:
            A.I(f's_branch L_pc_{name}')
        A.track_vm = False
        A.label(f'L_pl_{name}')
        A.I(f'buffer_load_dwordx4 v[{VP4}:{VP4+3}], off, {srd(SWS)}, s{sMB} offset:{16*stage} sc1')
        A.I('s_waitcnt vmcnt(0)')
        A.label(f'L_pc_{name}')
        A.I(f'v_and_b32 v{VP4}, v{VP4}, v{VP4+1}')
        A.I(f'v_and_b32 v{VP4+2}, v{VP4+2}, v{VP4+3}')
        A.I(f'v_and_b32 v{VP4}, v{VP4}, v{VP4+2}')
        A.I(f'v_readfirstlane_b32 s{sT0}, v{VP4}')
        A.I(f's_cmp_eq_u32 s{sT0}, 1')
        A.I(f's_cbranch_scc1 L_pd_{name}')
        A.I(f's_sub_u32 s{sPC}, s{sPC}, 1')
        A.I(f's_cbranch_scc0 L_pl_{name}')
        A.label(f'L_pd_{name}')
        A.track_vm = tv
        A.set_state(st)

    def wo_offsets(self):
        A = self.A
        l, g, t = T(0), T(1), T(5)
        A.I(f'v_and_b32 v{l}, 63, v{TID}')
        A.I(f'v_lshrrev_b32 v{g}, 4, v{l}')
        A.I(f'v_and_b32 v{T(3)}, 15, v{l}')
        A.I(f'v_lshlrev_b32 v{t}, 2, v{g}')
        A.I(f'v_xor_b32 v{t}, v{t}, v{T(3)}')
        A.I(f'v_lshlrev_b32 v{t}, 4, v{t}')
        A.I(f'v_lshl_add_u32 v{t}, v{g}, 10, v{t}')
        A.I(f's_lshl_b32 s{sT0}, s{sW_}, 14')
        A.I(f'v_add_u32 v{VDWO(0)}, s{sT0}, v{t}')
        for i in range(1, 4): A.I(f'v_add_u32 v{VDWO(i)}, {i*3072}, v{VDWO(0)}')
        A.I(f'v_lshlrev_b32 v{VL16}, 4, v{l}')
        hi, r, c, u = T(2), T(3), T(4), VPOLL
        A.I(f'v_lshrrev_b32 v{hi}, 5, v{l}')
        A.I(f'v_bfe_u32 v{r}, v{l}, 2, 2')
        A.I(f'v_and_b32 v{c}, 3, v{l}')
        A.I(f'v_lshl_add_u32 v{t}, v{hi}, 2, v{r}')
        A.I(f'v_lshlrev_b32 v{t}, 8, v{t}')
        A.I(f'v_and_b32 v{u}, 1, v{g}')
        A.I(f'v_lshl_add_u32 v{t}, v{u}, 5, v{t}')
        A.I(f'v_lshrrev_b32 v{u}, 1, v{c}')
        A.I(f'v_lshl_add_u32 v{t}, v{u}, 4, v{t}')
        A.I(f'v_and_b32 v{u}, 1, v{c}')
        A.I(f'v_lshl_add_u32 v{t}, v{u}, 3, v{t}')
        for nb in range(4):
            A.I(f'v_xor_b32 v{u}, {nb}, v{r}')
            A.I(f'v_lshl_add_u32 v{AWO(nb)}, v{u}, 6, v{t}')
        A.I(f's_mov_b32 s{sSLOT}, 0')
    def set_slot_static(self, slot):
        L = [f's_sub_u32 s{sT3}, {slot*32768}, s{sSLOT}', f's_mov_b32 s{sSLOT}, {slot*32768}']
        return L + [f'v_add_u32 v{AWO(nb)}, s{sT3}, v{AWO(nb)}' for nb in range(4)]
    def set_slot_head(self, isreg):
        L = []
        if self.opt.get('rot2', 1): L.append(f's_sub_u32 s{sT3}, s{isreg}, s{sB}')
        else: L.append(f's_sub_u32 s{sT3}, s{isreg}, s{sNT}')
        L += [f's_and_b32 s{sT3}, s{sT3}, 3', f's_lshl_b32 s{sT3}, s{sT3}, 2', f's_lshr_b32 s{sT3}, 0x2134, s{sT3}',
              f's_and_b32 s{sT3}, s{sT3}, 7', f's_lshl_b32 s{sT2}, s{sT3}, 15', f's_sub_u32 s{sT3}, s{sT2}, s{sSLOT}', f's_mov_b32 s{sSLOT}, s{sT2}']
        return L + [f'v_add_u32 v{AWO(nb)}, s{sT3}, v{AWO(nb)}' for nb in range(4)]
    def wo_dma(self, slot, hreg, tag):
        A = self.A
        A.I(f's_lshl_b32 s{sT2}, s{hreg}, 17')
        A.I(f's_lshl_b32 s{sT3}, s{sNT}, 8')
        A.I(f's_add_u32 s{sT2}, s{sT2}, s{sT3}')
        for half in range(2):
            A.I(f's_add_u32 m0, s{sLW}, {slot*32768 + half*16384}')
            if half: A.I(f's_add_u32 s{sT2}, s{sT2}, 0x10000')
            else: A.I('s_nop 0')
            for i in range(4):
                A.I(f'buffer_load_dwordx4 v{VDWO(i)}, {srd(SWO)}, s{sT2} offen offset:{i*1024} {self.opt.get("wopol","")} lds', tag)
    def o_loads(self, dst, hreg, tag):
        A = self.A
        A.I(f's_lshl_b32 s{sT2}, s{hreg}, 13')
        A.I(f's_add_u32 s{sT2}, s{sT2}, s{sOBASE}')
        for f in range(8):
            if f == 4: A.I(f's_add_u32 s{sT2}, s{sT2}, 4096')
            A.I(f'buffer_load_dwordx4 {vr(dst+4*f)}, v{VL16}, {srd(SWS)}, s{sT2} offen offset:{(f&3)*1024} sc1', tag)
    def a_reads(self, ph, f):
        L = []
        off = (f >> 2) * 16384 + (f & 3) * 4096
        for nb in range(4):
            a = AB(ph) + 4 * nb
            L.append(f'ds_read_b64_tr_b16 {vr(a,2)}, v{AWO(nb)} offset:{off}')
            L.append(f'ds_read_b64_tr_b16 {vr(a+2,2)}, v{AWO(nb)} offset:{off+2048}')
        return L
    def burst_pre(self, ph0=0):
        self.A.lines(self.a_reads(ph0, 0)); self.A.lines(self.a_reads(ph0 + 1, 1))
    def burst(self, heads, zero_first=False, ph0=0):
        A = self.A
        n = 8 * len(heads)
        for p in range(n):
            k, f = divmod(p, 8)
            ob, sw, cb = heads[k]
            if f == 0 and cb: cb()
            mf = []
            for nb in range(4):
                c = '0' if (zero_first and p == 0) else vr(16 * nb, 16)
                mf.append(f'{MF} {vr(16*nb,16)}, {vr(AB(ph0+p)+4*nb)}, {vr(ob+4*f)}, {c}')
            q = p + 2
            rd = []
            if q < n:
                k2, f2 = divmod(q, 8)
                if f2 == 0: rd += heads[k2][1]
                rd += self.a_reads(ph0 + q, f2)
            gaps = spread(rd, 4, 0, 4)
            weave(A, mf, gaps)

    def head_regs(self):
        A = self.A
        if self.opt.get('rot1', 1):
            A.I(f's_lshl_b32 s{sT0}, s{sB}, 1')
            A.I(f's_lshr_b32 s{sT0}, 0x4924, s{sT0}')
            A.I(f's_and_b32 s{sT0}, s{sT0}, 3')
            A.I(f's_mov_b32 s{sI123}, 0x321')
            A.I(f's_cmp_eq_u32 s{sT0}, 1')
            A.I(f's_cselect_b32 s{sI123}, 0x132, s{sI123}')
            A.I(f's_cmp_eq_u32 s{sT0}, 2')
            A.I(f's_cselect_b32 s{sI123}, 0x213, s{sI123}')
        else:
            A.I(f's_mov_b32 s{sI123}, 0x321')
    def head_abs(self, j, part, dst):
        A = self.A
        if j < 0:
            A.I(f's_mov_b32 s{dst}, s{sNT}')
        else:
            A.I(f's_lshr_b32 s{dst}, s{sI123}, {4*j}')
            A.I(f's_and_b32 s{dst}, s{dst}, 15')
            A.I(f's_add_u32 s{dst}, s{dst}, s{sNT}')
            A.I(f's_and_b32 s{dst}, s{dst}, 3')
        A.I(f's_add_u32 s{dst}, s{dst}, s{sHB}')
        if part == 2: A.I(f's_add_u32 s{dst}, s{dst}, 16')

    def x_round2(self):
        A = self.A
        opt = self.opt
        sHD = 70
        self.arm_issue()
        self.kv_dma_offsets()
        self.wo_offsets()
        self.head_regs()
        A.I(f's_lshl_b32 s{sT0}, s{sB}, 5')
        A.I(f's_add_u32 s{sT0}, s{sT0}, s{sH}')
        A.I(f's_add_u32 s{sT0}, s{sT0}, 16')
        A.I(f's_lshl_b32 s{sSOFK}, s{sT0}, 17')
        A.I(f's_add_u32 s{sSOFK}, s{sSOFK}, 0x8000')
        A.track_vm = True; A.vm = []
        def kv(T_):
            A.I(f's_mov_b32 s{sT1}, {(T_ % 3)*32768}')
            A.lines(self.kv_dma(sT1, sSOFK, 0), f'k{T_}'); A.lines(self.kv_dma(sT1, sSOFK, 1), f'k{T_}')
            A.I(f's_add_u32 s{sSOFK}, s{sSOFK}, 0x4000')
        def wo2(p, slot):
            A.I(f's_add_u32 s{sHD}, s{sB if opt.get("rot2", 1) else sNT}, {p}')
            A.I(f's_and_b32 s{sHD}, s{sHD}, 3')
            A.I(f's_add_u32 s{sHD}, s{sHD}, s{sHB}')
            A.I(f's_add_u32 s{sHD}, s{sHD}, 16')
            self.wo_dma(slot, sHD, f'v{p}')
        def pw(s):
            if s == opt.get('pw', -1): self.prefetch_wo()
        pw(16)
        self.o_epilogue(tag='o1')
        self.arm_check(8)
        self.stamp_now()
        self.head_abs(-1, 1, sHD); self.wo_dma(4, sHD, 'w0')
        kv(10)
        A.wait_vm_tag('w0')
        self.bar()
        pw(17)
        self.flag(0, 'o1')
        A.lines(self.set_slot_static(4)); self.burst_pre()
        self.head_abs(0, 1, sHD); self.wo_dma(3, sHD, 'w1')
        kv(11)
        self.poll_issue(0, 'pl')
        self.burst([(OA, [], None)], zero_first=True)
        A.wait_vm_tag('w1')
        self.bar()
        pw(18)
        self.head_abs(1, 1, sHD); self.wo_dma(4, sHD, 'w2')
        A.wait_vm_tag('pl')
        self.poll_check(0, 'o1', True)
        self.head_abs(0, 1, sHD); self.o_loads(OBF, sHD, 'ob1')
        kv(12)
        A.wait_vm_tag('ob1')
        self.bar()
        pw(19)
        A.lines(self.set_slot_static(3)); self.burst_pre()
        self.head_abs(1, 1, sHD); self.o_loads(OA, sHD, 'oa2')
        kv(13)
        self.burst([(OBF, [], None)])
        A.wait_vm_tag('oa2')
        self.bar()
        pw(20)
        A.lines(self.set_slot_static(4)); self.burst_pre()
        self.head_abs(2, 1, sHD); self.wo_dma(3, sHD, 'w3'); self.o_loads(OBF, sHD, 'ob3')
        kv(14)
        self.burst([(OA, [], None)])
        A.wait_vm_tag('ob3')
        self.bar()
        A.lines(self.set_slot_static(3)); self.burst_pre()
        wo2(0, 4)
        kv(15)
        self.burst([(OBF, [], None)])
        A.wait_vm_tag('k14')
        self.bar()
        wo2(1, 3); wo2(2, 1)
        A.wait_vm_tag('k15')
        self.bar()
        wo2(3, 2)
        self.bar()
        A.I('s_waitcnt vmcnt(0)'); A.vm = []
        self.bar()
        A.I(f's_lshl_b32 s{sT0}, s{sW_}, 13')
        A.I(f'v_add_u32 v{T(0)}, s{sT0}, v{VL16}')
        for f in range(8): A.I(f'ds_read_b128 {vr(OA+4*f)}, v{T(0)} offset:{f*1024}')
        A.lines(self.set_slot_head(sNT)); self.burst_pre()
        self.burst([(OA, [], None)])
        hidx = [71, 100, 101]
        for j in range(3):
            r = hidx[j]
            A.I(f's_add_u32 s{r}, s{sNT}, {j+1}')
            A.I(f's_and_b32 s{r}, s{r}, 3')
        A.lines(self.set_slot_head(hidx[0])); self.burst_pre()
        self.bar()
        self.poll_check(1, 'o2', False)
        self.stamp_now()
        bufs = [OBF, OC, OA]
        for j in range(3):
            A.I(f's_add_u32 s{sHD}, s{hidx[j]}, s{sHB}')
            A.I(f's_add_u32 s{sHD}, s{sHD}, 16')
            self.o_loads(bufs[j], sHD, f'r{j}')
        heads = []
        for j in range(3):
            heads.append((bufs[j], self.set_slot_head(hidx[j]) if j else [], None))
        self.burst(heads)
        self.stamp_now()
        A.track_vm = False; A.vm = []
        A.I(f's_cmp_eq_u32 s{sW_}, s{sKQ}')
        A.I('s_cbranch_scc1 L_own_part')
        self.part_base(sT0)
        A.I(f's_lshl_b32 s{sT1}, s{sW_}, 2')
        A.I(f's_add_u32 s{sT1}, s{sT1}, s{sKQ}')
        A.I(f's_lshl_b32 s{sT1}, s{sT1}, 14')
        A.I(f's_add_u32 s{sT0}, s{sT0}, s{sT1}')
        st = A.state()
        for j in range(16):
            if j and j % 4 == 0: A.I(f's_add_u32 s{sT0}, s{sT0}, 4096')
            A.I(f'buffer_store_dwordx4 {vr(4*j)}, v{VL16}, {srd(SWS)}, s{sT0} offen offset:{(j&3)*1024} sc1')
        A.I('s_waitcnt vmcnt(0)')
        A.I('s_branch L_join_part')
        A.label('L_own_part')
        A.set_state(st)
        for j in range(16): A.I(f'ds_write_b128 v{VL16}, {vr(4*j)} offset:{j*1024}')
        A.wait_lg(0)
        A.label('L_join_part')
        A.lg = []
        self.bar()
    def part_base(self, dst):
        A = self.A
        A.I(f's_lshl_b32 s{dst}, s{sOF16}, 2')
        A.I(f's_lshl_b32 s{sT3}, s{sNT}, 4')
        A.I(f's_add_u32 s{dst}, s{dst}, s{sT3}')
        A.I(f's_lshl_b32 s{dst}, s{dst}, 14')
        A.I(f's_add_u32 s{dst}, s{dst}, {hex(PBASE)}')

    def o_epilogue(self, tag=None, lds=False):
        A = self.A
        l2 = T(0)
        A.I(f'v_mov_b32 v{l2}, v{LB}')
        A.I(f'v_permlane32_swap_b32 v{LB}, v{l2}')
        A.I(f'v_add_f32 v{LB}, v{LB}, v{l2}')
        A.I(f'v_rcp_f32 v{l2}, v{LB}')
        A.I(f's_lshl_b32 s{sT0}, s{sH}, 13')
        A.I(f's_add_u32 s{sT0}, s{sT0}, s{sOBASE}')
        A.I(f'v_and_b32 v{T(1)}, 63, v{TID}')
        A.I(f'v_lshlrev_b32 v{T(1)}, 4, v{T(1)}')
        if lds:
            A.I(f's_lshl_b32 s{sT1}, s{sW_}, 13')
            A.I(f'v_add_u32 v{T(2)}, s{sT1}, v{T(1)}')
        for f in range(8):
            base = ACC(f >> 1) + 8 * (f & 1)
            d = KF(f)
            for j in range(0, 8, 2): A.I(f'v_pk_mul_f32 v[{base+j}:{base+j+1}], v[{base+j}:{base+j+1}], v[{l2}:{l2+1}] op_sel_hi:[1,0]')
            for j in range(4): A.I(f'v_cvt_pk_bf16_f32 v{d+j}, v{base+2*j}, v{base+2*j+1}')
            if f == 4: A.I(f's_add_u32 s{sT0}, s{sT0}, 4096')
            A.I(f'buffer_store_dwordx4 {vr(d)}, v{T(1)}, {srd(SWS)}, s{sT0} offen offset:{(f&3)*1024} sc1', tag)
            if lds: A.I(f'ds_write_b128 v{T(2)}, {vr(d)} offset:{f*1024}')

    def y_tail(self):
        A = self.A
        self.o_epilogue(lds=True)
        self.stamp_now()
        A.wait_lg(0)
        self.bar()
        A.I('s_waitcnt vmcnt(0)')
        self.bar()
        self.flag(1, 'o2')
        self.bar()
        self.flag(2, 'pt')

    def final(self):
        A = self.A
        self.poll_check(2, 'fin', False)
        self.stamp_now()
        self.part_base(sT0)
        A.I(f's_lshl_b32 s{sT1}, s{sKQ}, 16')
        A.I(f's_add_u32 s{sT0}, s{sT0}, s{sT1}')
        A.I(f's_lshl_b32 s{sT1}, s{sWV}, 11')
        A.I(f's_add_u32 s{sT0}, s{sT0}, s{sT1}')
        A.I(f'v_and_b32 v40, 63, v{TID}')
        A.I('v_lshlrev_b32 v41, 4, v40')
        for t in range(1, 4):
            A.I(f's_add_u32 s{sT2}, s{sKQ}, {t}')
            A.I(f's_and_b32 s{sT2}, s{sT2}, 3')
            A.I(f's_lshl_b32 s{sT2}, s{sT2}, 14')
            A.I(f's_add_u32 s{sT2}, s{sT2}, s{sT0}')
            for e in range(2):
                A.I(f'buffer_load_dwordx4 {vr(8*t+4*e)}, v41, {srd(SWS)}, s{sT2} offen offset:{e*1024} sc1')
        A.I(f'v_add_u32 v42, s{sT1}, v41')
        for e in range(2): A.I(f'ds_read_b128 {vr(4*e)}, v42 offset:{e*1024}')
        A.I('v_and_b32 v43, 31, v40')
        A.I('v_lshlrev_b32 v43, 11, v43')
        A.I('v_lshrrev_b32 v44, 5, v40')
        A.I('v_lshl_add_u32 v43, v44, 4, v43')
        A.I(f's_lshl_b32 s{sT0}, s{sB}, 2')
        A.I(f's_add_u32 s{sT0}, s{sT0}, s{sKQ}')
        A.I(f's_lshl_b32 s{sT0}, s{sT0}, 16')
        A.I(f's_lshl_b32 s{sT1}, s{sBR}, 10')
        A.I(f's_add_u32 s{sT0}, s{sT0}, s{sT1}')
        A.I(f's_lshl_b32 s{sT1}, s{sNT}, 8')
        A.I(f's_add_u32 s{sT0}, s{sT0}, s{sT1}')
        A.I(f's_lshl_b32 s{sT1}, s{sWV}, 5')
        A.I(f's_add_u32 s{sT0}, s{sT0}, s{sT1}')
        A.wait_lg(0)
        for t in range(1, 4):
            A.I(f's_waitcnt vmcnt({2*(3-t)})')
            for i in range(8): A.I(f'v_add_f32 v{i}, v{i}, v{8*t+i}')
        A.I('v_cvt_pk_bf16_f32 v32, v0, v1')
        A.I('v_cvt_pk_bf16_f32 v33, v2, v3')
        A.I('v_cvt_pk_bf16_f32 v34, v4, v5')
        A.I('v_cvt_pk_bf16_f32 v35, v6, v7')
        A.I('v_permlane32_swap_b32 v32, v34')
        A.I('v_permlane32_swap_b32 v33, v35')
        A.I(f'buffer_store_dwordx4 v[32:35], v43, {srd(SOUT)}, s{sT0} offen')

    def pws_init(self):
        A = self.A
        A.I(f'v_and_b32 v{T(0)}, 63, v{TID}')
        A.I(f'v_lshrrev_b32 v{T(1)}, 4, v{T(0)}')
        A.I(f'v_lshlrev_b32 v{T(1)}, 10, v{T(1)}')
        A.I(f'v_and_b32 v{T(0)}, 15, v{T(0)}')
        A.I(f'v_lshl_add_u32 v104, v{T(0)}, 4, v{T(1)}')
        A.I(f's_and_b32 s{sT0}, s{sB}, 3')
        A.I(f's_lshr_b32 s{sT1}, s{sB}, 2')
        A.I(f's_lshl_b32 s{sT1}, s{sT1}, 4')
        A.I(f's_add_u32 s{sT0}, s{sT0}, s{sT1}')
        A.I(f's_add_u32 s{sT0}, s{sT0}, s{sHB}')
        A.I(f's_lshl_b32 s{sT0}, s{sT0}, 17')
        A.I(f's_lshl_b32 s{sT1}, s{sNT}, 8')
        A.I(f's_add_u32 s{sT0}, s{sT0}, s{sT1}')
        A.I(f's_lshl_b32 s{sT1}, s{sW_}, 12')
        A.I(f's_add_u32 s70, s{sT0}, s{sT1}')
    def qp_dma_blocks(self, u):
        b0, b1, b2, b3 = super().qp_dma_blocks(u)
        if self.opt.get('pws'):
            pf = [f'buffer_load_dword v105, v104, {srd(SWO)}, s70 offen', 's_add_u32 s70, s70, 0x4000']
            b2 = self.next_slot(sKSEQ, sT2) + self.skip_block(sKMASK, f'L_qpd2_{u}', pf + self.kv_dma(sT2, sSOFK, 0))
        return b0, b1, b2, b3
    def y_round0(self):
        super().y_round0()
        if self.opt.get('pws'): self.pws_init()

    def gen(self, name):
        A = self.A
        A.raw(f'.globl {name}\n.p2align 8\n.type {name},@function\n{name}:')
        A.I('s_cmp_ge_u32 s2, 256')
        A.I('s_cbranch_scc1 L_k1_end')
        A.I('s_load_dwordx16 s[48:63], s[0:1], 0')
        A.I('s_load_dwordx4 s[64:67], s[0:1], 64')
        A.I('s_load_dwordx2 s[68:69], s[0:1], 96')
        A.I('s_load_dwordx4 s[84:87], s[0:1], 80')
        A.I(f'v_mov_b32 v{TID}, v0')
        self.stamp_init()
        self.stamp_now()
        A.I(f'v_lshrrev_b32 v1, 6, v0')
        A.I(f's_and_b32 s{sT0}, s2, 7')
        A.I(f'v_readfirstlane_b32 s{sWV}, v1')
        A.I(f's_lshr_b32 s{sT1}, s2, 3')
        A.I(f's_lshr_b32 s{sBR}, s{sT0}, 2')
        A.I(f's_and_b32 s{sKQ}, s{sT0}, 3')
        A.I(f's_lshl_b32 s{sHB}, s{sKQ}, 2')
        A.I(f's_lshr_b32 s{sNT}, s{sT1}, 3')
        A.I(f's_add_u32 s{sH}, s{sHB}, s{sNT}')
        A.I(f's_and_b32 s{sB}, s{sT1}, 7')
        A.I(f's_and_b32 s{sW_}, s{sWV}, 3')
        A.I(f's_lshr_b32 s{sGRP}, s{sWV}, 2')
        A.I(f's_lshl_b32 s{sLW}, s{sW_}, 12')
        A.I(f's_lshl_b32 s{sT0}, s{sBR}, 3')
        A.I(f's_add_u32 s{sT0}, s{sT0}, s{sB}')
        A.I(f's_lshl_b32 s{sOF16}, s{sT0}, 4')
        A.I(f's_lshl_b32 s{sT1}, s{sKQ}, 2')
        A.I(f's_add_u32 s{sOFL}, s{sOF16}, s{sT1}')
        A.I(f's_add_u32 s{sMB}, s{sOFL}, s{sNT}')
        A.I(f's_lshl_b32 s{sMB}, s{sMB}, 8')
        A.I(f's_add_u32 s{sMB}, s{sMB}, {hex(MBASE)}')
        A.I(f's_lshl_b32 s{sT0}, s{sT0}, 2')
        A.I(f's_add_u32 s{sT0}, s{sT0}, s{sW_}')
        A.I(f's_lshl_b32 s{sOBASE}, s{sT0}, 18')
        A.I('s_waitcnt lgkmcnt(0)')
        A.lg = []
        A.I(f's_mov_b32 s{SOUT}, s84\ns_mov_b32 s{SOUT+1}, s85\ns_mov_b32 s{SOUT+2}, 0x200000\ns_mov_b32 s{SOUT+3}, 0x20000')
        A.I(f's_mov_b32 s{SDBG}, s86\ns_mov_b32 s{SDBG+1}, s87\ns_mov_b32 s{SDBG+2}, 256\ns_mov_b32 s{SDBG+3}, 0x20000')
        OB_SAVE = None
        A.I(f's_cmp_eq_u32 s{sBR}, 0')
        for dst, a, b, n in ((SX, 48, 58, 0x100000), (SK, 50, 60, 0x2000000), (SV, 52, 62, 0x2000000), (SW, 54, 64, 0x400000), (SWO, 56, 66, 0x400000)):
            A.I(f's_cselect_b32 s{dst}, s{a}, s{b}')
            A.I(f's_cselect_b32 s{dst+1}, s{a+1}, s{b+1}')
            A.I(f's_mov_b32 s{dst+2}, {hex(n)}')
            A.I(f's_mov_b32 s{dst+3}, 0x20000')
        A.I(f's_mov_b32 s{SWS}, s68\ns_mov_b32 s{SWS+1}, s69\ns_mov_b32 s{SWS+2}, 0x10000000\ns_mov_b32 s{SWS+3}, 0x20000')
        A.I(f's_cmp_eq_u32 s{sGRP}, 0')
        A.I('s_cbranch_scc0 L_y_start')
        self.arm_init()
        A.I(f's_mov_b32 s{sCUR}, {2*32768}')
        A.I(f's_mov_b32 s{sCSEQ}, {hex(seq([3,4,2,3,4,2,3,3]))}')
        A.I(f's_mov_b32 s{sDMASK}, 0')
        A.I(f's_mov_b32 s{sKMASK}, 0')
        self.qp_read_addrs()
        for i in range(64): A.I(f'v_mov_b32 v{i}, 0')
        for i in list(range(96, 105)) + list(range(246, 251)): A.I(f'v_mov_b32 v{i}, 0')
        A.I('s_mov_b32 s70, 0')
        A.I(f's_mov_b32 s{sSOFA}, 0\ns_mov_b32 s{sSOFB}, 0\ns_mov_b32 s{sSOFK}, 0\ns_mov_b32 s{sDSEQ}, 0\ns_mov_b32 s{sKSEQ}, 0')
        self.stamp_now()
        A.I('s_barrier')
        A.I('s_branch L_qp_start')
        A.label('L_y_start')
        self.y_round0()
        A.label('L_qp_start')
        A.I(f's_mov_b32 s{sSTEP}, 0')
        self.stamp_take(74)
        self.qproj()
        self.arm_set()
        A.I(f's_cmp_eq_u32 s{sGRP}, 0')
        A.I(f's_cselect_b32 s{sCUR}, 0, {2*32768}')
        A.I(f's_mov_b32 s{sT0}, {hex(seq([0,1,2,0,1,2,0,0]))}')
        A.I(f's_cselect_b32 s{sCSEQ}, {hex(seq([1,2,0,1,2,0,1,1]))}, s{sT0}')
        self.at_read_addrs()
        A.I(f's_mov_b32 s{sTHR}, -1.0')
        A.I(f's_mov_b32 s{sFLOOR}, 0xff7fffff')
        A.I(f's_mov_b32 s{sCAP}, 0')
        A.I(f'v_mov_b32 v{LB}, 0')
        for i in range(16): A.I(f'v_mov_b32 v{NEGM+i}, 0')
        self.q_finalize()
        A.I(f's_mov_b32 s{sSTEP}, 0')
        self.stamp_now()
        self.stamp_take(74)
        self.attn()
        A.I('s_nop 7')
        self.stamp_now()
        A.I(f's_cmp_eq_u32 s{sGRP}, 0')
        A.I('s_cbranch_scc0 L_y_tail')
        self.x_round2()
        A.I('s_branch L_final')
        A.label('L_y_tail')
        A.lg = []
        self.y_tail()
        A.label('L_final')
        A.lg = []
        self.final()
        self.stamp_now()
        A.I('s_waitcnt vmcnt(0)')
        self.stamp_now()
        self.stamp_dump()
        A.I('s_waitcnt vmcnt(0)')
        A.label('L_k1_end')
        A.I('s_endpgm')
        self.fallback('a')
        self.fallback('b')
```

```python
import sys, json
sys.path.insert(0, 'gen')
import build
name = sys.argv[1]; opt = json.loads(sys.argv[2]) if len(sys.argv) > 2 else {}
s = build.buildf(opt)
open(f'cand/{name}.s', 'w').write(s)
print('written', name, len(s))
```
